```python
import torch

def _softmax(x, axis=-1):
    return torch.softmax(x, dim=axis)
def _gelu(x):
    return torch.nn.functional.gelu(x, approximate="tanh")
def _silu(x):
    return torch.nn.functional.silu(x)
def _sigmoid(x):
    return torch.sigmoid(x)
def _layernorm(x, axis=-1, eps=1e-5):
    m = x.mean(dim=axis, keepdim=True)
    v = x.var(dim=axis, keepdim=True, unbiased=False)
    return (x - m) / torch.sqrt(v + eps)
def _scatter_add(tgt, idx, src, axis=0):
    return tgt.clone().index_add_(axis, idx, src)
def _segment_sum(src, seg, n):
    out = torch.zeros((n,) + src.shape[1:], dtype=src.dtype)
    return out.index_add_(0, seg, src)
def _pad(x, pw):
    flat = tuple(v for pair in reversed(pw) for v in pair)
    return torch.nn.functional.pad(x, flat)

kernel_name = 'gated_mix__ssm_conv_s4__dense_activation_silu__prompt'

def setup_inputs():

    _w = (lambda a: (lambda t: t.to(torch.bfloat16) if t.is_floating_point() else t)(torch.as_tensor(a)))
    def _A_setup():
        B, L, D, N = 1, 2048, 640, 192
        A_re = -(lambda _x: torch.exp(torch.as_tensor(_x)))((lambda *s: torch.randn(*s, dtype=torch.bfloat16) * 6.4)(D, N))
        A_im = torch.pi * (lambda *s: torch.randn(*s, dtype=torch.bfloat16) * 0.05)(D, N)
        B_re = (lambda *s: torch.randn(*s, dtype=torch.bfloat16) * 0.2)(D, N)
        B_im = (lambda *s: torch.randn(*s, dtype=torch.bfloat16) * 0.2)(D, N)
        C_re = (lambda *s: torch.randn(*s, dtype=torch.bfloat16) * 0.2)(D, N)
        C_im = (lambda *s: torch.randn(*s, dtype=torch.bfloat16) * 0.2)(D, N)
        log_dt = (lambda *s: torch.randn(*s, dtype=torch.bfloat16) * 0.05)(D) * 0.5 - 4.0
        Dskip = (lambda *s: torch.randn(*s, dtype=torch.bfloat16) * 0.05)(D)
        return {
            "u": _w((lambda *s: torch.randn(*s, dtype=torch.bfloat16) * 0.05)(B, L, D)),
            "A_re": _w(A_re),
            "A_im": _w(A_im),
            "B_re": _w(B_re),
            "B_im": _w(B_im),
            "C_re": _w(C_re),
            "C_im": _w(C_im),
            "log_dt": _w(log_dt),
            "Dskip": _w(Dskip),
        }
    _A_in = _A_setup()

    def _B_setup():
        B, S, D, F = 1, 2048, 640, 1536
        return {
            "x": _w((lambda *s: torch.randn(*s, dtype=torch.bfloat16) * 0.05)(B, S, D)),
            "w1": _w((lambda *s: torch.randn(*s, dtype=torch.bfloat16) * 6.4)(D, F) * (D ** -0.5)),
            "w2": _w((lambda *s: torch.randn(*s, dtype=torch.bfloat16) * 0.2)(F, D) * (F ** -0.5)),
        }
    _B_in = _B_setup()

    return {
        "A_u": _A_in["u"],
        "A_A_re": _A_in["A_re"],
        "A_A_im": _A_in["A_im"],
        "A_B_re": _A_in["B_re"],
        "A_B_im": _A_in["B_im"],
        "A_C_re": _A_in["C_re"],
        "A_C_im": _A_in["C_im"],
        "A_log_dt": _A_in["log_dt"],
        "A_Dskip": _A_in["Dskip"],
        "B_x": _B_in["x"],
        "B_w1": _B_in["w1"],
        "B_w2": _B_in["w2"],
        "gate_w": _w((lambda *s: torch.randn(*s, dtype=torch.bfloat16) * 0.05)(640) * 16.0),
    }

def reference(A_u, A_A_re, A_A_im, A_B_re, A_B_im, A_C_re, A_C_im, A_log_dt, A_Dskip, B_x, B_w1, B_w2, gate_w):
    def _A_ref(u, A_re, A_im, B_re, B_im, C_re, C_im, log_dt, Dskip):
        Bsz, L, D = u.shape
        dt = torch.exp(log_dt)[:, None]
        A = A_re + 1j * A_im
        Bc = B_re + 1j * B_im
        Cc = C_re + 1j * C_im
        logdA = dt * A
        dB = dt * Bc
        l = (lambda x, dt: x.to(dt))(torch.arange(L), A_re.dtype)
        P = torch.exp(logdA[:, :, None] * l[None, None, :])
        K = torch.einsum("dn,dnl,dn->dl", Cc, P, dB).real
        L2 = 2 * L
        Kp = _pad(K, ((0, 0), (0, L)))
        up = (lambda x, *d: x.permute(*d))(u, 0, 2, 1)
        up = _pad(up, ((0, 0), (0, 0), (0, L)))
        Kf = (lambda x, axes=(-2,-1): torch.fft.rfft2(x.float(), dim=axes))(Kp[:, None, :], axes=(-2, -1))
        Uf = (lambda x, axes=(-2,-1): torch.fft.rfft2(x.float(), dim=axes))(up[:, :, None, :], axes=(-2, -1))
        Yf = Uf * Kf[None, :, :, :]
        y = (lambda x, s, axes=(-2,-1): torch.fft.irfft2(x, s=s, dim=axes).to(torch.bfloat16))(Yf, (1, L2), axes=(-2, -1))[:, :, 0, :L]
        y = (lambda x, *d: x.permute(*d))(y, 0, 2, 1) + u * Dskip[None, None, :]
        return y

    def _B_ref(x, w1, w2):
        h = torch.einsum("bsd,df->bsf", x, w1)
        h = _silu(h)
        out = torch.einsum("bsf,fd->bsd", h, w2)
        return out

    x = A_u
    g = _sigmoid((x * gate_w).sum(-1, keepdims=True))
    a = _A_ref(x, A_A_re, A_A_im, A_B_re, A_B_im, A_C_re, A_C_im, A_log_dt, A_Dskip)
    b = _B_ref(x, B_w1, B_w2)
    return g * a + (1 - g) * b
```

```python
NAME = 'gated_mix__ssm_conv_s4__dense_activation_silu__prompt'

HEADER = open('cdna_kernels/%s.s.ref' % NAME).read().split('; Override launch geometry')[0]

KARG = dict(u=0, A_re=8, A_im=16, B_re=24, B_im=32, C_re=40, C_im=48, log_dt=56, Dskip=64,
            x=72, w1=80, w2=88, gate_w=96, out=104, dbg=112, ws=120)

class Asm:
    def __init__(self):
        self.lines = []
        self.nlabel = 0
    def __call__(self, s=''):
        for l in s.split('\n'):
            l = l.strip()
            if l == '': continue
            if l.endswith(':') or l.startswith('.') or l.startswith(';'):
                self.lines.append(l)
            else:
                self.lines.append('    ' + l)
    def label(self, base='L'):
        self.nlabel += 1
        return '%s_%d' % (base, self.nlabel)
    def text(self):
        return '\n'.join(self.lines) + '\n'

def kernel_begin(a, name):
    a('.text')
    a('.globl %s' % name)
    a('.p2align 8')
    a('.type %s,@function' % name)
    a('%s:' % name)

def kernel_desc(a, name, vgpr=256, sgpr=102, accum=256):
    a('.section .rodata,"a"')
    a('.p2align 6')
    a('.amdhsa_kernel %s' % name)
    a('  .amdhsa_next_free_vgpr %d' % vgpr)
    a('  .amdhsa_next_free_sgpr %d' % sgpr)
    a('  .amdhsa_accum_offset %d' % accum)
    a('  .amdhsa_group_segment_fixed_size 0')
    a('  .amdhsa_kernarg_size 128')
    a('  .amdhsa_user_sgpr_count 2')
    a('  .amdhsa_user_sgpr_kernarg_segment_ptr 1')
    a('  .amdhsa_system_sgpr_workgroup_id_x 1')
    a('.end_amdhsa_kernel')

def file_text(launch_lines, body):
    s = HEADER
    for l in launch_lines: s += l + '\n'
    s += '.amdgcn_target "amdgcn-amd-amdhsa--gfx950"\n'
    s += body
    return s

def srd(a, d, b, nbytes):
    a('s_mov_b32 s%d, s%d' % (d, b))
    a('s_and_b32 s%d, s%d, 0xffff' % (d + 1, b + 1))
    a('s_mov_b32 s%d, 0x%x' % (d + 2, nbytes))
    a('s_mov_b32 s%d, 0x00020000' % (d + 3))
```

```python
import sys, argparse
sys.path.insert(0, 'exp')
from asmlib import *
from align import align

ap = argparse.ArgumentParser()
ap.add_argument('-o', default='k.s')
ap.add_argument('--stamps', action='store_true')
ap.add_argument('--fine', default='')
ap.add_argument('--dbgK', action='store_true')
ap.add_argument('--pubh', type=int, default=95)
ap.add_argument('--pollh', type=int, default=165)
ap.add_argument('--chkh', type=int, default=192)
ap.add_argument('--w2tail', type=int, default=14)
ap.add_argument('--w2silu', type=int, default=6)
ap.add_argument('--w2step', type=int, default=4)
ap.add_argument('--nh0', type=int, default=8)
args = ap.parse_args()

FSH = 5
FSTR = 1 << FSH
FWSH = 7
WS_FU = 0x00000
WS_FW = 0x20000
WS_FH = 0x40000
WS_FA = 0x60000
WS_UT = 0x100000; UT_PITCH = 4224
WS_AT = 0x500000; AT_PITCH = 4096
WS_W2P = 0x800000
WS_HP = 0x1000000
WS_ST = 0x2000000
WS_DBG = 0x2100000
WS_JUNK = 0x3000000
WS_SIZE = 0x4000000

TP = 272
TABSZ = 53 * TP
SLOT = 28672
L_RING = 4 * TABSZ
SL = [L_RING, L_RING + SLOT, L_RING + 2 * SLOT, 0, SLOT]
L_KL = L_RING + 3 * SLOT
KLSZ = 4608
L_GW = L_KL + 3 * KLSZ
L_DMX = L_GW + 2048
DP = 144
LDS_SIZE = 163840
assert L_DMX + 22 * DP <= LDS_SIZE
L_RED = 0
L_U = 61440
UC = 4160
UCH = 4 * UC


class G(Asm):
    def __init__(self):
        super().__init__()
        self.vm = 0; self.lg = 0; self.vm_done = 0; self.lg_done = 0
    def vmem(self, s_):
        self(s_); self.vm += 1; return self.vm
    def ds(self, s_):
        self(s_); self.lg += 1; return self.lg
    def wvm(self, tok):
        if tok <= self.vm_done: return
        n = min(self.vm - tok, 63)
        assert n >= 0
        self('s_waitcnt vmcnt(%d)' % n); self.vm_done = self.vm - n
    def wlg(self, tok):
        if tok <= self.lg_done: return
        n = min(self.lg - tok, 15)
        self('s_waitcnt lgkmcnt(%d)' % n); self.lg_done = self.lg - n
    def wlg0(self):
        self('s_waitcnt lgkmcnt(0)'); self.lg_done = self.lg
    def wvm0(self):
        self('s_waitcnt vmcnt(0)'); self.vm_done = self.vm
    def save(self): return (self.vm, self.lg, self.vm_done, self.lg_done)
    def restore(self, st): self.vm, self.lg, self.vm_done, self.lg_done = st

def v(i, n=1): return 'v%d' % i if n == 1 else 'v[%d:%d]' % (i, i + n - 1)
def ac(i, n=1): return 'a%d' % i if n == 1 else 'a[%d:%d]' % (i, i + n - 1)
def s(i, n=1): return 's%d' % i if n == 1 else 's[%d:%d]' % (i, i + n - 1)

a = G()
KN = NAME + '_kernel'
kernel_begin(a, KN)

pU, pAre, pAim, pBre, pBim, pCre, pCim, pLdt = 16, 18, 20, 22, 24, 26, 28, 30
pDsk, pX, pW1, pW2, pGW, pOut, pDbg, pWs = 32, 34, 36, 38, 40, 42, 44, 46
rU, rW1, rW2, rWS, rOUT, rGW = 48, 52, 56, 60, 64, 68
RWS = s(rWS, 4)
stamp_names = []
def stamp(name, fine=None):
    if not args.stamps: return
    if fine and fine not in args.fine.split(','): return
    i = len(stamp_names); stamp_names.append(name)
    assert i < 32
    a('s_memrealtime s[100:101]')
    a('s_memtime s[0:1]')
    a('s_waitcnt lgkmcnt(0)'); a.lg_done = a.lg
    a('v_writelane_b32 v254, s100, %d' % i)
    a('v_writelane_b32 v255, s0, %d' % i)

vDX, vDW, vGW0, vXA, vXB, vWB, vGWc, vGACC, vPOLL = 4, 8, 11, 12, 16, 20, 23, 24, 28
vGXA, vGXB = 44, 46

a('s_cmp_ge_u32 s2, 256')
a('s_cbranch_scc1 L_end')
a('s_load_dwordx16 s[16:31], s[0:1], 0')
a('s_load_dwordx16 s[32:47], s[0:1], 64')
a('s_memrealtime s[6:7]')
a('s_getpc_b64 s[4:5]')
a('L_pc:')
a('''
s_lshr_b32 s86, s2, 3
s_mul_i32 s87, s86, 9
v_min_u32 v32, 8, v0
v_add_u32 v32, s87, v32
v_lshlrev_b32 v32, 7, v32
v_min_u32 v32, L_end-L_pc, v32
''')
a.vmem('global_load_dword v33, v32, s[4:5]')
if args.stamps:
    a('v_mov_b32 v254, 0\nv_mov_b32 v255, 0')
a('''
v_and_b32 v1, 63, v0
v_lshrrev_b32 v34, 6, v0
v_lshlrev_b32 v2, 4, v1
v_readfirstlane_b32 s8, v34
s_and_b32 s4, s2, 7            ; xcd
s_lshr_b32 s92, s2, 4
s_lshl_b32 s92, s92, 3
s_add_u32 s92, s92, s4         ; cw
s_and_b32 s93, s86, 1          ; small ?
s_xor_b32 s77, s93, 1          ; big
s_mul_i32 s14, s92, 5
s_mul_i32 s94, s93, 3
s_add_u32 s14, s14, s94        ; c0
s_add_u32 s15, s14, 1          ; c1
s_add_u32 s3, s15, s77
s_cmp_eq_u32 s8, 0
s_cselect_b32 s94, s14, s3
s_cmp_eq_u32 s8, 1
s_cselect_b32 s94, s15, s94
s_cmp_eq_u32 s8, 3
s_cselect_b32 s95, s15, s94
s_cselect_b32 s96, 256, 0
s_cselect_b32 s97, 128, 0
v_cmp_gt_u32 vcc, 32, v1
v_mov_b32 v35, s94
v_mov_b32 v36, s95
v_cndmask_b32 v64, v35, v36, vcc
v_mov_b32 v35, s97
v_mov_b32 v36, s96
v_cndmask_b32 v63, v35, v36, vcc
v_mul_u32_u24 v35, 384, v64
v_add_u32 v63, v63, v35
v_lshl_add_u32 v63, v1, 2, v63
v_lshlrev_b32 v64, 1, v64
v_mov_b32 v3, 0
s_lshr_b32 s9, s4, 1
s_lshl_b32 s9, s9, 2
s_lshr_b32 s98, s86, 3         ; rl
s_add_u32 s9, s9, s98          ; rb
s_and_b32 s87, s4, 1
s_and_b32 s88, s86, 7          ; cl
s_lshl_b32 s10, s87, 3
s_add_u32 s10, s10, s88        ; cb
s_mul_i32 s13, s88, 5
s_lshr_b32 s13, s13, 2
s_mul_i32 s90, s98, 10
s_lshr_b32 s90, s90, 2
s_add_u32 s13, s13, s90
s_add_u32 s13, s13, s87
s_cmp_ge_u32 s13, 10
s_cselect_b32 s90, 10, 0
s_sub_u32 s13, s13, s90
s_mov_b32 s84, s13
s_mov_b32 s81, s13
s_mul_i32 s78, s8, 7168
''')
a('''
v_lshrrev_b32 v36, 3, v1
s_lshl_b32 s4, s9, 7
s_lshl_b32 s5, s8, 5
s_add_u32 s4, s4, s5
v_add_u32 v36, s4, v36
v_mul_u32_u24 v36, 1280, v36
v_and_b32 v37, 7, v1
v_lshrrev_b32 v38, 4, v1
v_xor_b32 v37, v37, v38
v_lshlrev_b32 v37, 4, v37
v_add_u32 v4, v36, v37
v_xor_b32 v37, 64, v37
v_add_u32 v5, v36, v37
v_add_u32 v5, %d, v5
v_add_u32 v6, %d, v4
v_add_u32 v7, %d, v5
''' % (10240 - 1024, 2 * (10240 - 1024), 2 * (10240 - 1024)))
a('s_waitcnt lgkmcnt(0)')
stamp('karg')
vRAW, vDT, vP2, vDSK = 48, 54, 56, 62
for j, ptr in enumerate((pAre, pAim, pBre, pBim, pCre, pCim)):
    a.vmem('global_load_dword %s, v63, %s' % (v(vRAW + j), s(ptr, 2)))
tPAR = a.vmem('global_load_short_d16_hi %s, v64, %s' % (v(vDT), s(pLdt, 2)))
srd(a, rU, pU, 2621440)
srd(a, rW1, pW1, 640 * 1536 * 2)

def dma_setup():
    a('s_lshl_b32 s79, s81, 7')
    a('s_mul_i32 s80, s81, %d' % (64 * 3072))
    a('s_add_u32 s81, s81, 1')
    a('s_cmp_ge_u32 s81, 10')
    a('s_cselect_b32 s81, 0, s81')
tCH = {}; tCHX = {}
def dma_ops(c, restore_m0=False):
    ops = []
    for j in range(7):
        def f(j=j):
            if j == 0: dma_setup()
            if restore_m0 or j in (0, 4):
                off = SL[c % 5] + (4096 if j >= 4 else 0)
                a('s_add_u32 m0, s78, %d' % off if off else 's_mov_b32 m0, s78')
                a('s_nop 0')
            if j < 4:
                t = a.vmem('buffer_load_dwordx4 %s, %s, s79 offen offset:%d lds' % (v(vDX + j), s(rU, 4), 1024 * j))
                tCHX[c] = t
            else:
                t = a.vmem('buffer_load_dwordx4 %s, %s, s80 offen offset:%d lds' % (v(vDW + j - 4), s(rW1, 4), 1024 * (j - 4)))
                if j == 6: tCH[c] = t
            if restore_m0: a('s_mov_b32 m0, s83')
        ops.append(f)
    return ops
c0ops = dma_ops(0)
for f in c0ops[:4]: f()
a('s_mov_b32 s82, s80')
a('''
s_mul_i32 s4, s8, %d
s_mul_i32 s5, s10, 192
s_add_u32 s4, s4, s5
''' % (16 * 3072))
for j in range(3):
    a('''
    v_add_u32 v36, %d, v1
    v_mul_u32_u24 v37, 5462, v36
    v_lshrrev_b32 v37, 16, v37
    v_mul_u32_u24 v38, 12, v37
    v_sub_u32 v38, v36, v38
    v_mul_u32_u24 v37, 3072, v37
    v_lshl_add_u32 v37, v38, 4, v37
    v_add_u32 v37, s4, v37
    v_subrev_u32 %s, %d, v37
    ''' % (64 * j, v(vDW + j), 1024 * j))
srd(a, rW2, pW2, 640 * 1536 * 2)
srd(a, rWS, pWs, WS_SIZE)
srd(a, rOUT, pOut, 2621440)
srd(a, rGW, pGW, 1280)
a('''
s_or_b32 s6, s6, 1
s_or_b32 s4, s2, s8
s_cmp_lg_u32 s4, 0
s_cbranch_scc1 L_nononce
v_mov_b32 v36, s6
v_mov_b32 v37, s7
global_store_dwordx2 v3, v[36:37], s[44:45] sc1
L_nononce:
''')
a('''
s_lshr_b32 s12, s88, 2         ; half
s_and_b32 s89, s88, 3
s_lshl_b32 s11, s87, 2
s_add_u32 s11, s11, s89        ; cb8
s_add_u32 s76, s8, s89
s_and_b32 s76, s76, 3          ; own tile
s_cmp_eq_u32 s89, 3
s_cselect_b32 s91, 1, 0
s_cmp_eq_u32 s87, 0
s_cselect_b32 s91, 1, s91      ; transposer predicate
s_lshl_b32 s92, s92, 1
s_add_u32 s92, s92, s93        ; o
s_lshl_b32 s99, s98, 1
s_add_u32 s99, s99, s12        ; sharer index of the W2' slice
s_lshl_b32 s85, s8, 8
s_sub_u32 s85, s85, 256
s_add_u32 s85, s85, s2         ; W2 job id
s_mul_i32 s83, s8, %d
s_mov_b32 s72, 0x3fb8aa3b
s_mov_b32 s73, 0x3e22f983
s_mov_b32 s74, 0x4138aa3b
s_mov_b32 s75, 0x3fa2f983
s_mov_b32 s93, 0xffff0000
''' % TABSZ)

vKA, vKB, vDMP, vE = 68, 69, 70, 72
a('''
v_and_b32 v36, 31, v1
v_lshrrev_b32 v37, 5, v1
v_mul_u32_u24 v38, %d, v36
v_lshl_add_u32 v38, v37, 4, v38
v_add_u32 v68, s83, v38
v_min_u32 v38, 20, v36
v_add_u32 v38, 32, v38
v_mul_u32_u24 v38, %d, v38
v_lshl_add_u32 v38, v37, 4, v38
v_add_u32 v69, s83, v38
v_min_u32 v38, 21, v36
v_mul_u32_u24 v38, %d, v38
v_lshl_add_u32 v70, v37, 4, v38
''' % (TP, TP, DP))
a('''
v_lshrrev_b32 v38, 1, v1
v_and_b32 v38, 7, v38
v_xor_b32 v38, v38, v37
v_lshlrev_b32 v38, 4, v38
v_lshl_add_u32 v38, v36, 7, v38
v_add_u32 v12, s78, v38
v_xor_b32 v13, 32, v12
v_xor_b32 v14, 64, v12
v_xor_b32 v15, 96, v12
''')
for k in range(4): a('v_add_u32 %s, %d, %s' % (v(vXB + k), SL[1], v(vXA + k)))
a('''
v_bfe_u32 v38, v1, 2, 2
v_lshl_add_u32 v38, v37, 3, v38
v_mul_u32_u24 v38, 192, v38
v_bfe_u32 v39, v1, 4, 1
v_lshl_add_u32 v38, v39, 5, v38
v_and_b32 v39, 3, v1
v_lshl_add_u32 v38, v39, 3, v38
v_add_u32 v20, %d, v38
v_add_u32 v21, %d, v38
v_add_u32 v22, %d, v38
''' % (4096, 4096 + SL[0], 4096 + SL[2]))
a('''
s_lshl_b32 s4, s12, 1
s_lshr_b32 s5, s76, 1
s_add_u32 s4, s4, s5
s_mul_i32 s4, s4, 7168
s_and_b32 s5, s76, 1
s_lshl_b32 s5, s5, 11
s_add_u32 s4, s4, s5
v_and_b32 v38, 15, v1
v_lshrrev_b32 v39, 4, v1
v_lshrrev_b32 v40, 1, v38
v_xor_b32 v40, v40, v39
v_lshlrev_b32 v40, 4, v40
v_lshl_add_u32 v40, v38, 7, v40
v_add_u32 v44, s4, v40
v_xor_b32 v45, 64, v44
v_add_u32 v46, %d, v44
v_add_u32 v47, %d, v45
v_lshlrev_b32 v11, 4, v39
v_add_u32 v11, %d, v11
v_mov_b32 v24, 0
v_mov_b32 v25, 0
v_mov_b32 v26, 0
v_mov_b32 v27, 0
''' % (SL[1], SL[1], L_GW))
a('''
v_and_b32 v38, 1, v1
v_lshrrev_b32 v39, 1, v1
v_lshlrev_b32 v39, 2, v39
v_mul_u32_u24 v40, %d, v38
v_add_u32 v72, v40, v39
v_mul_u32_u24 v40, %d, v38
v_add_u32 v73, v40, v39
v_add_u32 v73, %d, v73
v_add_u32 v41, 1, v1
v_and_b32 v38, 1, v41
v_lshrrev_b32 v39, 1, v41
v_lshlrev_b32 v39, 2, v39
v_mul_u32_u24 v40, %d, v38
v_add_u32 v74, v40, v39
v_add_u32 v74, %d, v74
v_cmp_eq_u32 vcc, 63, v1
v_mov_b32 v42, %d
s_nop 0
v_cndmask_b32 v74, v74, v42, vcc
v_lshrrev_b32 v38, 5, v1
v_and_b32 v39, 31, v1
v_mul_u32_u24 v38, %d, v38
v_lshl_add_u32 v75, v39, 2, v38
v_add_u32 v75, %d, v75
v_lshrrev_b32 v38, 5, v41
v_and_b32 v39, 31, v41
v_mul_u32_u24 v38, %d, v38
v_lshl_add_u32 v76, v39, 2, v38
v_add_u32 v76, %d, v76
v_lshrrev_b32 v38, 4, v1
v_and_b32 v39, 15, v1
v_mul_u32_u24 v38, %d, v38
v_lshl_add_u32 v77, v39, 3, v38
v_add_u32 v77, %d, v77
v_lshrrev_b32 v38, 4, v41
v_and_b32 v39, 15, v41
v_mul_u32_u24 v38, %d, v38
v_lshl_add_u32 v78, v39, 3, v38
v_add_u32 v78, %d, v78
''' % (4 * DP, 2 * DP, 8 * DP, 2 * DP, 8 * DP, 12 * DP, 2 * DP, 12 * DP, 2 * DP, 12 * DP, DP, 16 * DP, DP, 16 * DP))

a.vmem('global_load_short_d16_hi %s, v64, %s' % (v(vDSK), s(pDsk, 2)))
nafter = a.vm - tPAR
a('''
v_min_u32 v36, 59, v1
v_mul_u32_u24 v37, 5462, v36
v_lshrrev_b32 v37, 16, v37
v_mul_u32_u24 v38, 12, v37
v_sub_u32 v38, v36, v38
v_mul_u32_u24 v37, 3072, v37
v_lshl_add_u32 v65, v38, 7, v37
s_lshl_b32 s95, s86, 2
s_add_u32 s95, s95, s8
s_mul_i32 s95, s95, %d
s_mul_i32 s96, s87, 1536
s_add_u32 s95, s95, s96
''' % (5 * 3072))
W1PF = 'buffer_load_dword v67, v65, %s, s95 offen' % s(rW1, 4)
a('''
s_cmp_eq_u32 s8, 0
s_cbranch_scc1 L_r0
s_cmp_eq_u32 s8, 3
s_cbranch_scc1 L_r3
s_cmp_ge_u32 s85, 384
s_cbranch_scc1 L_rnone
s_lshr_b32 s4, s85, 3
s_mul_i32 s4, s4, %d
s_and_b32 s5, s85, 7
s_mul_i32 s5, s5, 160
s_add_u32 s4, s4, s5
s_mul_i32 s5, s8, 5120
s_add_u32 m0, s5, %d
''' % (32 * 1280, L_KL - 5120))
for j in range(5):
    a('''
    v_add_u32 v36, %d, v1
    v_mul_u32_u24 v37, 6554, v36
    v_lshrrev_b32 v37, 16, v37
    v_mul_u32_u24 v38, 10, v37
    v_sub_u32 v38, v36, v38
    v_mul_u32_u24 v37, 1280, v37
    v_lshl_add_u32 v37, v38, 4, v37
    buffer_load_dwordx4 v37, %s, s4 offen lds
    s_add_u32 m0, m0, 1024
    ''' % (64 * j, s(rW2, 4)))
a(W1PF)
a('s_waitcnt vmcnt(%d)' % (nafter + 6))
a('s_branch L_rdone')
a('L_r0:')
a('s_mul_i32 s4, s14, 384')
a('s_add_u32 s4, s4, 256')
a('v_lshlrev_b32 v36, 1, v1')
a('v_add_u32 v36, s4, v36')
for j, ptr in enumerate((pAre, pAim, pBre, pBim, pCre, pCim)):
    a('global_load_short_d16_hi %s, v36, %s' % (v(vP2 + j), s(ptr, 2)))
a(W1PF)
a('s_waitcnt vmcnt(%d)' % (nafter + 7))
a('s_branch L_rdone')
a('L_r3:')
a('s_mov_b32 m0, %d' % L_GW)
a('s_nop 0')
a('buffer_load_dwordx4 v2, %s, 0 offen lds' % s(rGW, 4))
a('buffer_load_dwordx4 v2, %s, 0 offen offset:1024 lds' % s(rGW, 4))
a('''
s_mul_i32 s4, s98, 10
s_lshr_b32 s4, s4, 2
s_add_u32 s4, s4, s87
s_add_u32 s4, s4, 4
s_cmp_ge_u32 s4, 10
s_cselect_b32 s5, 10, 0
s_sub_u32 s4, s4, s5
s_cmp_ge_u32 s4, 5
s_cselect_b32 s5, 5, 0
s_sub_u32 s4, s4, s5           ; missing chunk mod 5
s_lshl_b32 s4, s4, 7
s_lshl_b32 s5, s9, 3
s_add_u32 s5, s5, s88
s_mul_i32 s5, s5, %d
s_add_u32 s4, s4, s5
v_and_b32 v36, 31, v1
v_mul_u32_u24 v36, 640, v36
buffer_load_dword v66, v36, %s, s4 offen
''' % (16 * 1280, s(rU, 4)))
a(W1PF)
a('s_waitcnt vmcnt(%d)' % (nafter + 4))
a('s_branch L_rdone')
a('L_rnone:')
a(W1PF)
a('s_waitcnt vmcnt(%d)' % (nafter + 1))
a('L_rdone:')
a.vm_done = tPAR
a.vm += 1; tROLE = a.vm
a.vm += 1
stamp('par')

vA1, vA2 = 80, 96
vSET = [112, 118]
vW = 124
def cmul(d, x, y, t):
    return ('v_pk_mul_f32 %s, %s, %s op_sel:[0,0] op_sel_hi:[1,0]' % (v(t, 2), v(x, 2), v(y, 2)),
            'v_pk_fma_f32 %s, %s, %s, %s op_sel:[1,1,0] op_sel_hi:[0,1,1] neg_lo:[1,0,0]' % (v(d, 2), v(x, 2), v(y, 2), v(t, 2)))

def kgen_setup(k, tmp):
    Q1, Z, S0 = vSET[k & 1], vSET[k & 1] + 2, vSET[k & 1] + 4
    if k < 2:
        P = tmp
        if k == 0:
            a('v_mul_f32 %s, s72, %s' % (v(vDT), v(vDT)))
            a('v_exp_f32 %s, %s' % (v(vDT), v(vDT)))
        for j in range(6):
            a(('v_lshlrev_b32 %s, 16, %s' if k == 0 else 'v_and_b32 %s, s93, %s') % (v(P + j), v(vRAW + j)))
            if k == 0 and j == 1: a('v_cvt_pk_bf16_f32 %s, %s, %s' % (v(vDT), v(vDT), v(vDT)))
            if k == 0 and j == 3: a('v_and_b32 %s, s93, %s' % (v(vDT), v(vDT)))
    else:
        P = vP2
    l1, l8, cs1, cs8, m, bc, t0 = [tmp + 6 + 2 * i for i in range(7)]
    m0_, m1_ = cmul(bc, P + 2, P + 4, t0)
    a('v_pk_mul_f32 %s, %s, %s op_sel_hi:[1,0]' % (v(l8, 2), v(P, 2), v(vDT, 2)))
    a(m0_)
    a('v_pk_mul_f32 %s, %s, s[72:73]' % (v(l1, 2), v(l8, 2)))
    a('v_pk_mul_f32 %s, %s, s[74:75]' % (v(l8, 2), v(l8, 2)))
    a(m1_)
    a('v_fract_f32 %s, %s' % (v(l1 + 1), v(l1 + 1)))
    a('v_fract_f32 %s, %s' % (v(l8 + 1), v(l8 + 1)))
    a('v_exp_f32 %s, %s' % (v(m + 1), v(l8)))
    a('v_exp_f32 %s, %s' % (v(m), v(l1)))
    a('v_cos_f32 %s, %s' % (v(cs8), v(l8 + 1)))
    a('v_sin_f32 %s, %s' % (v(cs8 + 1), v(l8 + 1)))
    a('v_cos_f32 %s, %s' % (v(cs1), v(l1 + 1)))
    a('v_sin_f32 %s, %s' % (v(cs1 + 1), v(l1 + 1)))
    a('v_pk_mul_f32 %s, %s, %s op_sel:[0,1] op_sel_hi:[1,1]' % (v(Q1, 2), v(cs8, 2), v(m, 2)))
    a('v_pk_mul_f32 %s, %s, %s op_sel_hi:[1,0]' % (v(S0, 2), v(bc, 2), v(vDT, 2)))
    a('v_pk_mul_f32 %s, %s, %s op_sel_hi:[1,0]' % (v(Z, 2), v(cs1, 2), v(m, 2)))

GROUPS = [[('Q2','Q1','Q1'),('S1','S0','Z')], [('Q4','Q2','Q2'),('Q3','Q2','Q1'),('S2','S1','Z')],
          [('Q8','Q4','Q4'),('Q5','Q4','Q1'),('S3','S2','Z'),('Q6','Q4','Q2')],
          [('Q16','Q8','Q8'),('Q7','Q4','Q3'),('S4','S3','Z'),('Q9','Q8','Q1')],
          [('Q32','Q16','Q16'),('Q10','Q8','Q2'),('S5','S4','Z'),('Q11','Q8','Q3')],
          [('S8','S0','Q32'),('Q12','Q8','Q4'),('S6','S5','Z'),('Q13','Q8','Q5')],
          [('S12','S8','Q32'),('S10','S4','Q32'),('S7','S6','Z'),('Q14','Q8','Q6')],
          [('S14','S12','Q32'),('S13','S10','Q32'),('S9','S2','Q32'),('Q15','Q8','Q7')],
          [('S16','S14','Q32'),('S15','S13','Q32'),('S11','S6','Q32'),('Q17','Q16','Q1')],
          [('S17','S16','Q32'),('Q18','Q16','Q2'),('Q19','Q16','Q3'),('Q20','Q16','Q4')],
          [('S18','S17','Q32'),('Q21','Q16','Q5'),('Q22','Q16','Q6'),('Q23','Q16','Q7')],
          [('S19','S18','Q32'),('Q24','Q16','Q8'),('Q25','Q16','Q9'),('Q26','Q16','Q10')],
          [('S20','S19','Q32'),('Q27','Q16','Q11'),('Q28','Q16','Q12'),('Q29','Q16','Q13')],
          [('Q30','Q16','Q14'),('Q31','Q16','Q15')]]
def kgen_body(k, side):
    R = {'Q1': vSET[k & 1], 'Z': vSET[k & 1] + 2, 'S0': vSET[k & 1] + 4}
    tmps = [vW + 2 * i for i in range(4)]
    cv = [vW + 8 + i for i in range(10)]
    nxt = vW + 18
    pend = ['S0', 'Q1']
    def flush():
        for i, nm in enumerate(pend):
            a('v_cvt_pk_bf16_f32 %s, %s, %s%s' % (v(cv[i]), v(R[nm]), '' if nm[0] == 'Q' else '-', v(R[nm] + 1)))
        for i, nm in enumerate(pend):
            row = int(nm[1:]) + (0 if nm[0] == 'Q' else 32)
            a.ds('ds_write_addtid_b32 %s offset:%d' % (v(cv[i]), row * TP))
        pend.clear()
        if side: side.pop(0)()
    for gi, grp in enumerate(GROUPS):
        ins = []
        for i, (nm, x, y) in enumerate(grp):
            R[nm] = nxt; nxt += 2
            ins.append(cmul(R[nm], R[x], R[y], tmps[i]))
        for m_, f_ in ins: a(m_)
        for m_, f_ in ins: a(f_)
        pend += [nm for nm, _, _ in grp if nm != 'Q32']
        if gi % 2 == 1: flush()
    assert not pend and nxt <= 250
    while side: side.pop(0)()
vFR = 160
def kgen_reads():
    toks = []
    a.wlg0()
    for kk in range(8):
        a.ds('ds_read_b128 %s, %s offset:%d' % (v(vFR + 8 * kk, 4), v(vKA), 32 * kk))
        toks.append(a.ds('ds_read_b128 %s, %s offset:%d' % (v(vFR + 8 * kk + 4, 4), v(vKB), 32 * kk)))
    return toks
def kgen_mfma(toks, first):
    for kk in range(8):
        a.wlg(toks[kk])
        acc = vA1 if kk < 4 else vA2
        c = '0' if (first and kk in (0, 4)) else v(acc, 16)
        a('v_mfma_f32_32x32x16_bf16 %s, %s, %s, %s' % (v(acc, 16), v(vFR + 8 * kk, 4), v(vFR + 8 * kk + 4, 4), c))

def spin(label, load, cmp_):
    a('s_cbranch_vccz %s_ok' % label)
    a('s_mov_b32 s82, 0x40000')
    a('%s_lp:' % label)
    a('s_sleep 1')
    a(load)
    a('s_waitcnt vmcnt(0)')
    a(cmp_)
    a('s_sub_u32 s82, s82, 1')
    a('s_cmp_eq_u32 s82, 0')
    a('s_cbranch_scc1 %s_ok' % label)
    a('s_cbranch_vccnz %s_lp' % label)
    a('%s_ok:' % label)

a('s_mov_b32 m0, s83')
a('v_mov_b32 v36, 0x3f80')
a.ds('ds_write_addtid_b32 v36 offset:0')
kgen_setup(0, vW)
kgen_body(0, [])
NL = 'global_load_dwordx2 %s, v3, s[44:45] sc1' % v(vPOLL, 2)
tNON = a.vmem(NL)
tk0 = kgen_reads()
kgen_setup(1, vW)
kgen_mfma(tk0, True)
stamp('r0')

a.wvm(tROLE)
st = a.save()
a('s_cmp_eq_u32 s91, 0')
a('s_cbranch_scc1 L_notr')
a('''
v_bfe_u32 v36, v1, 2, 2
v_and_b32 v37, 3, v1
v_lshl_add_u32 v38, v37, 3, v36
v_lshrrev_b32 v39, 5, v1
v_bfe_u32 v40, v1, 4, 1
v_lshrrev_b32 v41, 1, v38
v_and_b32 v41, 7, v41
v_xor_b32 v41, v41, v39
v_lshlrev_b32 v41, 4, v41
v_lshl_add_u32 v41, v38, 7, v41
v_lshl_add_u32 v41, v40, 3, v41
v_add_u32 v41, s78, v41
v_xor_b32 v42, 32, v41
v_xor_b32 v43, 64, v41
v_xor_b32 v40, 96, v41
''')
xr = {0: 41, 32: 42, 64: 43, 96: 40}
toks = []
for n in range(4):
    for h in range(2):
        toks.append(a.ds('ds_read_b64_tr_b16 %s, v%d offset:%d' % (v(224 + 4 * n + 2 * h, 2), xr[(32 * n) ^ (32 * h)], SL[0] + 512 * h)))
a('''
v_lshrrev_b32 v38, 4, v1
v_lshl_add_u32 v38, v38, 2, v37
v_mul_u32_u24 v38, %d, v38
v_lshl_add_u32 v36, v36, 4, v38
s_mul_i32 s4, s84, %d
s_lshl_b32 s5, s9, 8
s_add_u32 s4, s4, s5
s_lshl_b32 s5, s8, 6
s_add_u32 s4, s4, s5
s_add_u32 s4, s4, %d
''' % (UT_PITCH, 64 * UT_PITCH, WS_UT + 128))
for n in range(4):
    a.wlg(toks[2 * n + 1])
    a('buffer_store_dwordx4 %s, v36, %s, s4 offen sc1' % (v(224 + 4 * n, 4), RWS))
    a('s_add_u32 s4, s4, %d' % (16 * UT_PITCH))
a('L_notr:')
a.restore(st)
a.vm += 1; tCHORE = a.vm
stamp('chore')
def w0op(j):
    def f():
        a('s_add_u32 m0, s78, %d' % (SL[0] + 4096))
        a('s_nop 0')
        t = a.vmem('buffer_load_dwordx4 %s, %s, s82 offen offset:%d lds' % (v(vDW + j), s(rW1, 4), 1024 * j))
        if j == 2: tCH[0] = t
        a('s_mov_b32 m0, s83')
    return f
nop = lambda: None
kgen_body(1, [nop, nop, nop, nop, w0op(0), w0op(1), w0op(2)])
tk1 = kgen_reads()
a.wvm(tCHORE)
CMP0 = 'v_cmp_eq_u64 vcc, 0, %s' % v(vPOLL, 2)
a(CMP0)
spin('L_sn', NL, CMP0)
a('v_readfirstlane_b32 s6, %s' % v(vPOLL))
a('v_readfirstlane_b32 s7, %s' % v(vPOLL + 1))
def publish(soff_code, skip=None):
    a(soff_code)
    a('s_mov_b64 exec, 1')
    ins = 'buffer_store_dwordx2 v[30:31], v3, %s, s4 offen sc1' % RWS
    if skip: a(ins)
    else: a.vmem(ins)
    a('s_mov_b64 exec, -1')
    if skip: a(skip + ':')
a('v_mov_b32 v30, %s' % v(vPOLL))
a('v_mov_b32 v31, %s' % v(vPOLL + 1))
publish('''
s_cmp_eq_u32 s91, 0
s_cbranch_scc1 L_skfu
s_lshl_b32 s4, s84, 6
s_lshl_b32 s5, s9, 2
s_add_u32 s4, s4, s5
s_add_u32 s4, s4, s8
s_lshl_b32 s4, s4, %d
''' % FSH, 'L_skfu')
kgen_mfma(tk1, False)
stamp('r1')
a('s_cmp_lg_u32 s8, 0')
a('s_cbranch_scc1 L_nor2')
kgen_setup(2, vW)
kgen_body(2, [])
kgen_mfma(kgen_reads(), False)
dma_setup(); dma_setup()
a('s_branch L_r2done')
a('L_nor2:')
st = a.save()
a('''
s_cmp_ge_u32 s85, 384
s_cbranch_scc1 L_now2
v_lshrrev_b32 v36, 5, v1
v_bfe_u32 v37, v1, 4, 1
v_bfe_u32 v38, v1, 2, 2
v_lshl_add_u32 v38, v37, 2, v38
v_lshl_add_u32 v38, v36, 4, v38
v_mul_u32_u24 v38, 160, v38
v_and_b32 v39, 3, v1
v_mul_u32_u24 v39, 40, v39
v_add_u32 v38, v38, v39
s_mul_i32 s4, s8, 5120
s_add_u32 s4, s4, %d
v_add_u32 v38, s4, v38
''' % (L_KL - 5120))
toks = []
for i in range(5):
    for h in range(2):
        toks.append(a.ds('ds_read_b64_tr_b16 %s, v38 offset:%d' % (v(140 + 4 * i + 2 * h, 2), 8 * i + 1280 * h)))
a('''
s_and_b32 s4, s85, 7
s_mul_i32 s4, s4, 48
s_lshr_b32 s5, s85, 3
s_add_u32 s4, s4, s5
s_mul_i32 s4, s4, 5120
s_add_u32 s4, s4, %d
s_add_u32 s5, s4, 4096
''' % WS_W2P)
for i in range(5):
    a.wlg(toks[2 * i + 1])
    if i < 4: a('buffer_store_dwordx4 %s, v2, %s, s4 offen offset:%d sc1' % (v(140 + 4 * i, 4), RWS, 1024 * i))
    else: a('buffer_store_dwordx4 %s, v2, %s, s5 offen sc1' % (v(140 + 4 * i, 4), RWS))
a('s_nop 0')
a('L_now2:')
a.restore(st)

a.vm += 1; tW2C = a.vm
a('s_mul_i32 s4, s8, %d' % (32 * 1280))
for j in range(4): a('v_subrev_u32 %s, s4, %s' % (v(32 + j), v(vDX + j)))
a('s_mul_i32 s4, s8, %d' % (16 * 3072))
for j in range(3): a('v_subrev_u32 %s, s4, %s' % (v(40 + j), v(vDW + j)))
for c in (1, 2):
    ops = dma_ops(c)
    ops[0]()
    a('s_cmp_lg_u32 s8, %d' % (c + 1))
    a('s_cbranch_scc1 L_nosh%d' % c)
    a('s_mov_b32 m0, %d' % SL[c])
    a('s_nop 0')
    for j in range(4): a('buffer_load_dwordx4 %s, %s, s79 offen offset:%d lds' % (v(32 + j), s(rU, 4), 1024 * j))
    a('s_mov_b32 m0, %d' % (SL[c] + 4096))
    a('s_nop 0')
    for j in range(3): a('buffer_load_dwordx4 %s, %s, s80 offen offset:%d lds' % (v(40 + j), s(rW1, 4), 1024 * j))
    a('s_add_u32 m0, s78, %d' % SL[c])
    a('s_nop 0')
    a('L_nosh%d:' % c)
    for f in ops[1:]: f()
a('L_r2done:')
a('v_add_u32 v36, s83, %s' % v(vDMP))
a('s_nop 7\ns_nop 3')
a('s_cmp_eq_u32 s8, 3')
a('s_cbranch_scc1 L_d3')
for i in range(8): a('v_pk_add_f32 %s, %s, %s' % (v(vA2 + 2 * i, 2), v(vA2 + 2 * i, 2), v(vA1 + 2 * i, 2)))
a('s_branch L_dj')
a('L_d3:')
a('v_add_u32 v37, %d, %s' % (L_DMX, v(vDMP)))
for i in range(4): a('ds_write_b128 v37, %s offset:%d' % (v(vA1 + 4 * i, 4), 32 * i))
a('L_dj:')
for i in range(4): a('ds_write_b128 v36, %s offset:%d' % (v(vA2 + 4 * i, 4), 32 * i))
a.wlg0()
a('s_barrier')
stamp('dump')
a('s_cmp_eq_u32 s8, 3')
a('s_cbranch_scc1 L_noexp')
def gather(dst, base, ad):
    for i in range(7): a('v_add_u32 %s, %s, %s' % (v(ad + i), base, v(vE + i)))
    P4 = DP // 4
    a('ds_read2_b32 %s, %s offset0:0 offset1:%d' % (v(dst, 2), v(ad), P4))
    a('ds_read2_b32 %s, %s offset0:%d offset1:%d' % (v(dst + 2, 2), v(ad), 2 * P4, 3 * P4))
    a('ds_read2_b32 %s, %s offset0:0 offset1:%d' % (v(dst + 4, 2), v(ad + 1), P4))
    a('ds_read2_b32 %s, %s offset0:0 offset1:%d' % (v(dst + 6, 2), v(ad + 3), P4))
    a('ds_read_b64 %s, %s' % (v(dst + 8, 2), v(ad + 5)))
    a('ds_read_b32 %s, %s' % (v(dst + 10), v(ad + 2)))
    a('ds_read_b32 %s, %s' % (v(dst + 11), v(ad + 4)))
    a('ds_read_b32 %s, %s' % (v(dst + 12), v(ad + 6)))
gather(112, 's83', 164)
a('''
v_cmp_eq_u32 vcc, 0, v1
s_mul_i32 s4, s8, %d
s_add_u32 s4, s4, %d
v_cndmask_b32 v36, 0, %s, vcc
v_lshlrev_b32 v37, 3, v1
v_add_u32 v37, s4, v37
v_add_u32 v38, s4, v2
v_lshlrev_b32 v39, 5, v1
v_add_u32 v39, s4, v39
v_mov_b32 v40, 0
v_mov_b32 v41, 0
''' % (KLSZ, L_KL, v(vDSK)))
a('s_cmp_eq_u32 s8, 0')
a('s_cbranch_scc1 L_exp1')
a('s_cmp_eq_u32 s8, 1')
a('s_mov_b32 s4, %d' % (3 * TABSZ))
a('s_cselect_b32 s4, %d, s4' % L_DMX)
gather(128, 's4', 172)
a('s_waitcnt lgkmcnt(0)')
for i in range(0, 12, 2): a('v_pk_add_f32 %s, %s, %s' % (v(112 + i, 2), v(112 + i, 2), v(128 + i, 2)))
a('v_add_f32 v124, v124, v140')
a('L_exp1:')
a('s_waitcnt lgkmcnt(0)')
a('v_add_f32 v112, v112, v36')
cv = lambda d, x, y: a('v_cvt_pk_bf16_f32 v%d, v%d, v%d' % (d, x, y))
cv(146, 116, 116); cv(147, 117, 122)
cv(148, 118, 118); cv(149, 118, 119); cv(150, 119, 119); cv(151, 123, 123)
cv(152, 120, 120); cv(153, 120, 120); cv(154, 120, 121); cv(155, 121, 121)
cv(156, 121, 121); cv(157, 121, 121); cv(158, 124, 124); cv(159, 124, 124)
cv(144, 112, 113); cv(145, 114, 115)
a('ds_write_b64 v37, v[40:41]')
a('ds_write_b64 v37, v[146:147] offset:1024')
a('ds_write_b128 v38, v[148:151] offset:1536')
a('ds_write_b128 v39, v[152:155] offset:2560')
a('ds_write_b128 v39, v[156:159] offset:2576')
a('ds_write_b64 v37, v[144:145] offset:512')
if args.dbgK:
    a('s_waitcnt lgkmcnt(0)')
    a('s_mul_i32 s5, s94, 4096')
    a('s_add_u32 s5, s5, %d' % WS_DBG)
    for i in range(4):
        a('ds_read_b128 v[160:163], v38 offset:%d' % (512 + 1024 * i))
        a('s_waitcnt lgkmcnt(0)')
        a('buffer_store_dwordx4 v[160:163], v2, %s, s5 offen offset:%d' % (RWS, 1024 * i))
        a('s_waitcnt vmcnt(0)')
a('L_noexp:')
stamp('exp')

vACC = 48
vF = [96, 112, 128]
vGF = 144
vUL = 160
def xbase(regA, regB, slot):
    return (regB, SL[slot] - SL[1]) if slot in (1, 2) else (regA, SL[slot])
def g1_reads(n):
    c, kk = divmod(n, 4); slot = c % 5; f = vF[n % 3]
    r, off = xbase(vXA + kk, vXB + kk, slot)
    ops = [('x', 'ds_read_b128 %s, %s offset:%d' % (v(f, 4), v(r), off))]
    wb, wo = {0: (vWB + 1, 0), 1: (vWB + 1, SLOT), 2: (vWB + 2, 0), 3: (vWB, 0), 4: (vWB, SLOT)}[slot]
    for j in range(3):
        for h in range(2):
            ops.append(('w%d' % j, 'ds_read_b64_tr_b16 %s, %s offset:%d' % (v(f + 4 + 4 * j + 2 * h, 2), v(wb), wo + kk * 7168 + h * 768 + 64 * j)))
    return ops

a('s_cmp_lg_u32 s8, 0')
a('s_cbranch_scc1 L_w0w')
a('s_waitcnt vmcnt(0)')
a('L_w0w:')
a.wvm(tW2C)
publish('''
s_cmp_ge_u32 s85, 384
s_cbranch_scc1 L_skfw
s_and_b32 s4, s85, 7
s_lshl_b32 s4, s4, 6
s_lshr_b32 s5, s85, 3
s_add_u32 s4, s4, s5
s_lshl_b32 s4, s4, %d
s_add_u32 s4, s4, %d
''' % (FWSH, WS_FW), 'L_skfw')
a('s_barrier')
a('s_lshl_b32 s4, s13, 7')
a('v_add_u32 %s, s4, %s' % (v(vGWc), v(vGW0)))
tok = {}
for n in (0, 1):
    tok[n] = {}
    for nm, ins in g1_reads(n): tok[n][nm] = a.ds(ins)

FUL = 'buffer_load_dwordx2 %s, v32, %s, 0 offen sc1' % (v(vPOLL, 2), RWS)
FWL = 'buffer_load_dwordx2 v[34:35], v33, %s, s86 offen sc1' % RWS
tk = {}
def w2_load(n):
    def f():
        if n % 4 == 0 and n > 0: a('s_add_u32 s87, s87, 4096')
        tk['w2'] = a.vmem('buffer_load_dwordx4 %s, v2, %s, s87 offen offset:%d sc1' % (ac(4 * n, 4), RWS, 1024 * (n % 4)))
    return f
def u_load(ch, j):
    def f():
        r = vUL + 8 * ch
        if j == 0: a.vmem('buffer_load_dwordx4 %s, v2, %s, s%d offen offset:4 sc1' % (v(r + 4, 4), RWS, 88 + ch))
        else: tk['u%d' % ch] = a.vmem('buffer_load_dword %s, v2, %s, s%d offen sc1' % (v(r + 3), RWS, 88 + ch))
    return f
def polls():
    a('''
    v_min_u32 v33, 11, v1
    v_lshlrev_b32 v33, %d, v33
    s_lshl_b32 s86, s11, 6
    s_mul_i32 s87, s8, 12
    s_add_u32 s86, s86, s87
    s_lshl_b32 s86, s86, %d
    s_add_u32 s86, s86, %d
    ''' % (FWSH, FWSH, WS_FW))
    a.vmem(FWL)
def polls2():
    a('''
    s_and_b32 s34, s14, 0x3c0
    s_and_b32 s35, s3, 0x3c0
    s_sub_u32 s35, s35, s34
    s_lshl_b32 s4, s8, 4
    s_add_u32 s34, s34, s4
    v_bfe_u32 v32, v1, 4, 1
    v_mul_u32_u24 v32, s35, v32
    v_and_b32 v36, 15, v1
    v_add3_u32 v32, v32, v36, s34
    v_lshlrev_b32 v32, %d, v32
    ''' % FSH)
    tk['poll'] = a.vmem(FUL)
def check_polls():
    a.wvm(tk['poll'])
    c3 = 'v_cmp_ne_u64 vcc, s[6:7], v[34:35]'
    a(c3); spin('L_sw', FWL, c3)
    c1 = 'v_cmp_ne_u64 vcc, s[6:7], %s' % v(vPOLL, 2)
    a(c1); spin('L_su0', FUL, c1)
def after_polls():
    a('''
    s_lshl_b32 s4, s8, 10
    s_add_u32 s4, s4, %d
    s_mul_i32 s88, s14, %d
    s_add_u32 s88, s88, s4
    s_mul_i32 s89, s15, %d
    s_add_u32 s89, s89, s4
    s_mul_i32 s90, s3, %d
    s_add_u32 s90, s90, s4
    s_mul_i32 s87, s11, 48
    s_mul_i32 s4, s8, 12
    s_add_u32 s87, s87, s4
    s_mul_i32 s87, s87, 5120
    s_add_u32 s87, s87, %d
    s_mul_i32 s4, s99, %d
    s_add_u32 s4, s4, s87
    v_min_u32 v33, 59, v1
    v_lshlrev_b32 v33, 7, v33
    ''' % (WS_UT + 128 - 4, UT_PITCH, UT_PITCH, UT_PITCH, WS_W2P, 60 * 128))
    a.vmem('buffer_load_dword v34, v33, %s, s4 offen sc1' % RWS)
def ustage_setup():
    a('''
    v_lshlrev_b32 v37, 4, v0
    v_add_u32 v37, %d, v37
    v_cmp_eq_u32 vcc, 0, v0
    v_mul_u32_u24 v40, 13108, v1
    v_lshrrev_b32 v40, 16, v40
    v_cndmask_b32 v38, -1, v3, vcc
    v_mul_u32_u24 v41, 5, v40
    v_sub_u32 v41, v1, v41
    v_mul_u32_u24 v40, %d, v40
    v_lshl_add_u32 v40, v41, 3, v40
    v_mov_b32 v42, 0
    v_mov_b32 v43, 0
    ''' % (L_U + 32, UC))
def ustage_pad():
    a('s_cmp_lg_u32 s8, 0')
    a('s_cbranch_scc1 L_nopad')
    a('s_mov_b32 exec_hi, 0x0fffffff')
    a('ds_write_b64 v40, v[42:43] offset:%d' % L_U)
    a('s_mov_b32 exec_hi, -1')
    a('L_nopad:')
def ustage(ch):
    r = vUL + 8 * ch; o = vUL + 24 + 4 * ch
    def f0():
        a.wvm(tk['u%d' % ch])
        a('v_and_b32 %s, v38, %s' % (v(r + 3), v(r + 3)))
        a.ds('ds_write_b128 v37, %s offset:%d' % (v(r + 4, 4), ch * UCH))
        a('v_add_u32 v39, %d, v37' % (ch * UCH + 2 * UC + 4))
    def f1():
        for k in range(4): a('v_alignbit_b32 %s, %s, %s, 16' % (v(o + k), v(r + 4 + k), v(r + 3 + k)))
    def f2():
        a.ds('ds_write2_b32 v39, %s, %s offset0:0 offset1:1' % (v(r + 4), v(r + 5)))
        a.ds('ds_write2_b32 v39, %s, %s offset0:2 offset1:3' % (v(r + 6), v(r + 7)))
        a('v_add_u32 v41, %d, v39' % UC)
    def f3():
        a.ds('ds_write_b128 v37, %s offset:%d' % (v(o, 4), ch * UCH + UC))
    def f4():
        a.ds('ds_write2_b32 v41, %s, %s offset0:0 offset1:1' % (v(o), v(o + 1)))
        a.ds('ds_write2_b32 v41, %s, %s offset0:2 offset1:3' % (v(o + 2), v(o + 3)))
    return [f0, f1, f2, f3, f4]
w2q = [w2_load(n) for n in range(60)]
side = dma_ops(3) + dma_ops(4)
side2 = []
gt = {}
for n in range(40):
    c, kk = divmod(n, 4); slot = c % 5; f = vF[n % 3]
    if kk == 2 and c + 1 < 10:
        b = c + 1
        while b not in tCH: side.pop(0)()
        a.wvm(tCH[b])
        a('s_barrier')
        stamp('B%d' % b, 'g1')
        if 2 <= b and b + 3 < 10: side += dma_ops(b + 3)
        if b == 2: side += [polls, polls2]
        if b == 4:
            while 'poll' not in tk: side.pop(0)()
            check_polls()
            side = [after_polls] + side
        if b == 5: side += [u_load(ch, j) for ch in range(3) for j in range(2)]
        if b == 7:
            side += [w2q.pop(0) for _ in range(args.w2tail)]
            side2 += [ustage_setup]
        if b == 8: side2 += [ustage_pad] + ustage(0) + ustage(1) + ustage(2)
    rd = g1_reads(n + 2) if n + 2 < 40 else []
    tok[n + 2] = {}
    grd = []
    if kk < 2:
        r, off = xbase(vGXA + kk, vGXB + kk, slot)
        grd = [('gx', 'ds_read_b128 %s, %s offset:%d' % (v(vGF + 8 * kk, 4), v(r), off)),
               ('g%d' % kk, 'ds_read_b128 %s, %s offset:%d' % (v(vGF + 8 * kk + 4, 4), v(vGWc), 64 * kk))]
    allrd = [(tok[n + 2], x) for x in rd] + [(gt, x) for x in grd]
    per = [[], [], []]
    for i, r in enumerate(allrd): per[min(2, i * 3 // max(len(allrd), 1))].append(r)
    for j in range(3):
        a.wlg(max(tok[n]['x'], tok[n]['w%d' % j]))
        cin = '0' if n == 0 else v(vACC + 16 * j, 16)
        a('v_mfma_f32_32x32x16_bf16 %s, %s, %s, %s' % (v(vACC + 16 * j, 16), v(f + 4 + 4 * j, 4), v(f, 4), cin))
        for d, (nm, ins) in per[j]: d[nm] = a.ds(ins)
        if side and (j != 1 or len(side) > 8): side.pop(0)()
        if side2 and j != 0: side2.pop(0)()
    if kk == 1:
        a('s_add_u32 s13, s13, 1')
        a('s_cmp_ge_u32 s13, 10')
        a('s_cselect_b32 s13, 0, s13')
        a('s_lshl_b32 s4, s13, 7')
        a('v_add_u32 %s, s4, %s' % (v(vGWc), v(vGW0)))
    if kk >= 2:
        g = kk - 2
        a.wlg(gt['g%d' % g])
        a('v_mfma_f32_16x16x32_bf16 %s, %s, %s, %s' % (v(vGACC, 4), v(vGF + 8 * g + 4, 4), v(vGF + 8 * g, 4), v(vGACC, 4)))
while side: side.pop(0)()
while side2: side2.pop(0)()
stamp('g1')

a('''
v_bfe_u32 v36, v1, 4, 1
v_mul_u32_u24 v36, %d, v36
v_lshrrev_b32 v37, 5, v1
v_lshl_add_u32 v36, v37, 8, v36
v_and_b32 v37, 15, v1
v_lshl_add_u32 v36, v37, 4, v36
s_lshl_b32 s4, s9, 3
s_lshl_b32 s5, s8, 1
s_add_u32 s4, s4, s5
s_mul_i32 s4, s4, 48
s_mul_i32 s5, s10, 3
s_add_u32 s4, s4, s5
s_lshl_b32 s79, s4, 10
s_add_u32 s79, s79, %d
s_mov_b32 s72, 0xbfb8aa3b
s_mov_b32 s73, 0xbfb8aa3b
''' % (48 * 1024, WS_HP))
nsil = args.w2silu
for g in range(6):
    j, p = g // 2, g % 2
    x = vACC + 16 * j + 8 * p
    e = 96 + 8 * (g & 1); o = 112 + 4 * (g & 3)
    for i in range(4): a('v_pk_mul_f32 %s, %s, s[72:73]' % (v(e + 2 * i, 2), v(x + 2 * i, 2)))
    for i in range(8): a('v_exp_f32 %s, %s' % (v(e + i), v(e + i)))
    for i in range(4): a('v_pk_add_f32 %s, %s, 1.0 op_sel_hi:[1,0]' % (v(e + 2 * i, 2), v(e + 2 * i, 2)))
    for i in range(8):
        a('v_rcp_f32 %s, %s' % (v(e + i), v(e + i)))
        if i == 3:
            for _ in range(nsil * (g + 1) // 6 - nsil * g // 6): w2q.pop(0)()
    for i in range(4): a('v_pk_mul_f32 %s, %s, %s' % (v(e + 2 * i, 2), v(e + 2 * i, 2), v(x + 2 * i, 2)))
    for i in range(4): a('v_cvt_pk_bf16_f32 %s, %s, %s' % (v(o + i), v(e + 2 * i), v(e + 2 * i + 1)))
    tH = a.vmem('buffer_store_dwordx4 %s, v36, %s, s79 offen offset:%d sc1' % (v(o, 4), RWS, 1024 * j + 512 * p))
a('''
v_bfe_u32 v40, v1, 2, 2
v_mul_u32_u24 v40, %d, v40
v_and_b32 v41, 3, v1
v_lshl_add_u32 v40, v41, 3, v40
v_lshrrev_b32 v41, 4, v1
v_lshlrev_b32 v42, 4, v41
v_sub_u32 v40, v40, v42
v_add_u32 v32, %d, v40
v_and_b32 v40, 15, v1
v_lshl_add_u32 v40, v40, 5, v42
v_add_u32 v33, %d, v40
''' % (UC, L_U + 56, L_KL + 32))
a.wlg0()
a('s_barrier')
stamp('silu')

FHL = 'buffer_load_dwordx2 %s, v34, %s, s86 offen sc1' % (v(vPOLL, 2), RWS)
def pub_h():
    a.wvm(tH)
    publish('''
    s_lshl_b32 s4, s9, 4
    s_add_u32 s4, s4, s10
    s_lshl_b32 s4, s4, 2
    s_add_u32 s4, s4, s8
    s_lshl_b32 s4, s4, %d
    s_add_u32 s4, s4, %d
    ''' % (FSH, WS_FH))
def poll_h():
    a('''
    v_bfe_u32 v34, v1, 1, 2
    v_and_b32 v35, 1, v1
    v_lshl_add_u32 v34, v34, 2, v35
    v_lshlrev_b32 v34, %d, v34
    s_lshl_b32 s86, s9, 6
    s_lshl_b32 s4, s8, 4
    s_add_u32 s86, s86, s4
    s_lshl_b32 s4, s12, 1
    s_add_u32 s86, s86, s4
    s_lshl_b32 s86, s86, %d
    s_add_u32 s86, s86, %d
    ''' % (FSH, FSH, WS_FH))
    tk['pollh'] = a.vmem(FHL)
def h_addrs():
    a('''
    s_lshl_b32 s4, s9, 3
    s_lshl_b32 s5, s12, 2
    s_add_u32 s4, s4, s5
    s_mul_i32 s4, s4, 48
    s_mul_i32 s5, s8, 12
    s_add_u32 s4, s4, s5
    s_lshl_b32 s4, s4, 10
    s_add_u32 s4, s4, %d
    ''' % WS_HP)
    for n in range(4):
        a('s_add_u32 s5, s76, %d' % (n + 1))
        a('s_and_b32 s5, s5, 3')
        a('s_mul_i32 s5, s5, %d' % (48 * 1024))
        a('s_add_u32 s%d, s4, s5' % (94 + n))
def hreg(n, k):
    if n == 0: return 176 + 4 * k
    if n == 1: return 48 + 4 * k
    if n == 2: return 96 + 4 * k
    return 144 + 4 * k if k < 8 else 224 + 4 * (k - 8)
tHL = {}
def h_load(n, k):
    def f():
        if k in (4, 8): a('s_add_u32 s%d, s%d, 4096' % (94 + n, 94 + n))
        tHL[(n, k)] = a.vmem('buffer_load_dwordx4 %s, v2, %s, s%d offen offset:%d sc1' % (v(hreg(n, k), 4), RWS, 94 + n, 1024 * (k % 4)))
    return f
def conv_pair(accA, accB, gA, sreg, tmp):
    a('v_cvt_pk_bf16_f32 %s, %s, %s' % (v(tmp), v(accA), v(accA + 1)))
    a('v_cvt_pk_bf16_f32 %s, %s, %s' % (v(tmp + 1), v(accA + 2), v(accA + 3)))
    a('v_cvt_pk_bf16_f32 %s, %s, %s' % (v(tmp + 2), v(accB), v(accB + 1)))
    a('v_cvt_pk_bf16_f32 %s, %s, %s' % (v(tmp + 3), v(accB + 2), v(accB + 3)))
    a('s_nop 1')
    a('v_permlane16_swap_b32 %s, %s' % (v(tmp), v(tmp + 2)))
    a('v_permlane16_swap_b32 %s, %s' % (v(tmp + 1), v(tmp + 3)))
    return a.vmem('buffer_store_dwordx4 %s, v36, %s, s%d offen offset:%d sc1' % (v(tmp, 4), RWS, sreg, 512 * gA))
def conv_single(accA, gA, sreg, tmp):
    a('v_cvt_pk_bf16_f32 %s, %s, %s' % (v(tmp), v(accA), v(accA + 1)))
    a('v_cvt_pk_bf16_f32 %s, %s, %s' % (v(tmp + 1), v(accA + 2), v(accA + 3)))
    return a.vmem('buffer_store_dwordx2 %s, v37, %s, s%d offen offset:%d sc1' % (v(tmp, 2), RWS, sreg, 512 * gA))
def split(code):
    return [(lambda l=l: a(l)) for l in code.split('\n') if l.strip()]
STORE_ADDRS = '''
v_and_b32 v38, 15, v1
v_lshlrev_b32 v38, 5, v38
v_lshrrev_b32 v39, 5, v1
v_lshl_add_u32 v36, v39, 4, v38
v_bfe_u32 v39, v1, 4, 1
v_lshl_add_u32 v36, v39, 9, v36
v_lshrrev_b32 v39, 4, v1
v_lshl_add_u32 v37, v39, 3, v38
s_lshl_b32 s88, s14, 12
s_add_u32 s88, s88, %d
s_lshl_b32 s89, s15, 12
s_add_u32 s89, s89, %d
s_lshl_b32 s90, s3, 12
s_add_u32 s90, s90, %d
s_lshl_b32 s80, s2, 12
s_add_u32 s80, s80, 0x%x
''' % (WS_AT, WS_AT, WS_AT, WS_JUNK)

def conv_body(stages, nbuf, bufsz, vBUF, sidework):
    def issue(i, r): return a.ds(r[1](vBUF + (i % nbuf) * bufsz + r[2]))
    toks = [dict() for _ in stages]
    ahead = nbuf - 1
    for i in range(ahead):
        for r in stages[i][0]: toks[i][r[0]] = issue(i, r)
    gi = 0
    for i, (rd, mf) in enumerate(stages):
        nxt = list(stages[i + ahead][0]) if i + ahead < len(stages) else []
        base = vBUF + (i % nbuf) * bufsz
        nm = len(mf); done = 0
        for k, (acc, kA, rA, kB, rB, first) in enumerate(mf):
            a.wlg(max(toks[i][kA], toks[i][kB]))
            a('v_mfma_f32_16x16x32_bf16 %s, %s, %s, %s' % (v(acc, 4), v(base + rA, 4), v(base + rB, 4), '0' if first else v(acc, 4)))
            want = min(len(nxt), -(-len(nxt) * (k + 1) // nm))
            while done < want:
                toks[i + ahead][nxt[done][0]] = issue(i + ahead, nxt[done]); done += 1
            for f in sidework.get(gi, []): f()
            gi += 1

NH0 = args.nh0
def make_side(tag):
    sw = {}
    pos = 1
    for f in w2q:
        sw.setdefault(pos, []).append(f); pos += args.w2step
    assert pos <= args.pollh + args.w2step, pos
    sw.setdefault(args.pubh, []).append(pub_h)
    for i, f in enumerate(split(STORE_ADDRS)): sw.setdefault(20 + 4 * i + 2, []).append(f)
    sw.setdefault(120, []).append(h_addrs)
    sw.setdefault(args.pollh, []).append(poll_h)
    def chk():
        a.wvm(tk['pollh'])
        c_ = 'v_cmp_ne_u64 vcc, s[6:7], %s' % v(vPOLL, 2)
        a(c_); spin('L_sh' + tag, FHL, c_)
    sw.setdefault(args.chkh, []).append(chk)
    for i in range(NH0): sw.setdefault(min(215, args.chkh + 3 * i), []).append(h_load(0, i))
    if 'cv' in args.fine.split(','):
        for p in (54, 108, 162): sw.setdefault(p, []).append(lambda p=p: stamp('cv%d' % p))
    return sw

def build_stage(Gs, accmap, lorder, goff, xoff, xrel, first_stage):
    rd = []; mf = []
    rem = [(i, g - i, g) for g in Gs for i in range(g + 1)]
    order = []; sG = []; sX = []
    for kind, idx in lorder:
        if kind == 'G':
            for h in range(2):
                rd.append(('G%d%s' % (idx, 'a' if h == 0 else ''), (lambda r, o=goff + 512 * idx + (8 if h == 0 else 0): 'ds_read_b64_tr_b16 %s, v32 offset:%d' % (v(r, 2), o)), 4 * idx + 2 * h))
            sG.append(idx)
        else:
            rd.append(('X%d' % idx, (lambda r, o=xoff + 512 * idx: 'ds_read_b128 %s, v33 offset:%d' % (v(r, 4), o)), xrel + 4 * idx))
            sX.append(idx)
        for pr in list(rem):
            if pr[0] in sG and pr[1] in sX: order.append(pr); rem.remove(pr)
    assert not rem
    seen = set()
    for (i, ip, g) in order:
        mf.append((accmap[g], 'G%d' % i, 4 * i, 'X%d' % ip, xrel + 4 * ip, first_stage and g not in seen)); seen.add(g)
    return rd, mf

st0 = a.save(); sn0 = list(stamp_names)
a('s_cmp_eq_u32 s8, 3')
a('s_cbranch_scc1 L_conv3')
a('s_mul_i32 s4, s8, %d' % UCH)
a('v_add_u32 v32, s4, v32')
a('s_mul_i32 s4, s8, %d' % KLSZ)
a('v_add_u32 v33, s4, v33')
Gs = [0, 4, 5, 6, 7]
LO = [('G', 0), ('X', 0), ('X', 4), ('G', 4), ('G', 1), ('X', 3), ('G', 2), ('X', 2), ('G', 3), ('X', 1), ('X', 5), ('G', 5), ('X', 6), ('G', 6), ('X', 7), ('G', 7)]
stages = [build_stage(Gs, {g: 4 + 4 * i for i, g in enumerate(Gs)}, LO, 64 * mp, 64 * (7 - mp), 32, mp == 0) for mp in range(8)]
conv_body(stages, 2, 64, 48, make_side('m'))
a('s_cmp_eq_u32 s77, 0')
a('s_cselect_b32 s90, s80, s90')
a('s_cmp_eq_u32 s8, 1')
a('s_cselect_b32 s88, s89, s88')
a('s_cmp_eq_u32 s8, 2')
a('s_cselect_b32 s88, s90, s88')
a('s_nop 2')
conv_single(4, 0, 88, 38)
conv_pair(8, 12, 4, 88, 40)
conv_pair(16, 20, 6, 88, 44)
st_main = a.save(); tk_main = dict(tk); tHL_main = dict(tHL); sn_main = list(stamp_names)
a('s_branch L_convdone')
a('L_conv3:')
a.restore(st0); stamp_names[:] = sn0
acc3 = [4, 8, 12, 16, 20, 144, 148, 152, 156]
LO3 = [('G', 0), ('X', 1), ('G', 1), ('X', 0), ('X', 2), ('G', 2), ('X', 3), ('G', 3)]
stages = [build_stage((1, 2, 3), {g: acc3[3 * ch + g - 1] for g in (1, 2, 3)}, LO3, ch * UCH + 64 * mp, ch * KLSZ + 64 * (7 - mp), 16, mp == 0)
          for mp in range(8) for ch in range(3)]
conv_body(stages, 3, 32, 48, make_side('w'))
a('s_cmp_eq_u32 s77, 0')
a('s_cselect_b32 s90, s80, s90')
a('s_nop 5')
for ch in range(3):
    conv_single(acc3[3 * ch], 1, 88 + ch, 40 + 2 * ch)
    conv_pair(acc3[3 * ch + 1], acc3[3 * ch + 2], 2, 88 + ch, 160 + 4 * ch)
a('L_convdone:')
a.restore(st_main); tk = tk_main; tHL.clear(); tHL.update(tHL_main); stamp_names[:] = sn_main
tA = a.vm
a.lg_done = a.lg
stamp('conv')

hq = [h_load(n, k) for n in range(4) for k in range(12)][NH0:]
for _ in range(6): hq.pop(0)()
accs = [[4, 8, 12, 16, 20], [40, 44, 240, 244, 248]]
for n in range(3):
    a('s_add_u32 s4, s8, %d' % (n + 1))
    a('s_and_b32 s4, s4, 3')
    a('s_mul_i32 s4, s4, %d' % (3 * 5120))
    if n: a('s_add_u32 s4, s4, %d' % (L_RED + n * 5120))
    a('v_add_u32 v%d, s4, v2' % (32 + n))
a('s_mul_i32 s4, s8, %d' % (3 * 5120))
a('v_add_u32 v35, s4, v2')
FAL0 = 'buffer_load_dwordx2 v[36:37], v28, %s, s86 offen sc1' % RWS
FAL1 = 'buffer_load_dwordx2 v[38:39], v28, %s, s86 offen offset:%d sc1' % (RWS, FSTR)
def pub_a():
    a.wvm(tA)
    publish('''
    s_lshl_b32 s4, s92, 2
    s_add_u32 s4, s4, s8
    s_lshl_b32 s4, s4, %d
    s_add_u32 s4, s4, %d
    ''' % (FSH, WS_FA))
def poll_a():
    a('s_lshl_b32 s86, s11, %d' % (7 + FSH))
    a('s_add_u32 s86, s86, %d' % WS_FA)
    a('v_lshlrev_b32 v28, %d, v1' % (FSH + 1))
    a.vmem(FAL0)
    tk['polla'] = a.vmem(FAL1)
a.wvm(tk['w2'])
redq = []
for n in range(4):
    acc = accs[n & 1]
    for k in range(12):
        a.wvm(tHL[(n, k)])
        for i in range(5):
            a('v_mfma_f32_16x16x32_bf16 %s, %s, %s, %s' % (v(acc[i], 4), ac(4 * (5 * k + i), 4), v(hreg(n, k), 4), '0' if k == 0 else v(acc[i], 4)))
            if i == 1 and hq: hq.pop(0)()
            if i == 3 and redq and k >= 2: redq.pop(0)()
        if n == 0 and k == 9: pub_a()
        if n == 3 and k == 2: poll_a()
    if n < 3:
        for i in range(5):
            def f(i=i, n=n, acc=acc): a.ds('ds_write_b128 v%d, %s offset:%d' % (32 + n, v(acc[i], 4), 1024 * i))
            redq.append(f)
    stamp('g2_%d' % n, 'g2' if n < 3 else None)
assert not redq and not hq
a('''
v_mul_f32 v24, s72, v24
v_exp_f32 v24, v24
s_nop 0
v_add_f32 v24, 1.0, v24
v_rcp_f32 v24, v24
''')
a.wlg0()
a('s_barrier')
vR = 60
rt = []
for n in range(3):
    for i in range(5):
        rt.append(a.ds('ds_read_b128 %s, v35 offset:%d' % (v(vR + 20 * n + 4 * i, 4), n * 5120 + 1024 * i)))
vA = 128
a('''
v_lshrrev_b32 v32, 4, v1
v_mul_u32_u24 v33, %d, v32
v_and_b32 v34, 15, v1
v_lshl_add_u32 v33, v34, 1, v33
s_lshl_b32 s4, s9, 7
s_lshl_b32 s5, s12, 6
s_add_u32 s4, s4, s5
s_lshl_b32 s5, s76, 4
s_add_u32 s79, s4, s5
s_mul_i32 s4, s11, %d
s_lshl_b32 s5, s79, 1
s_add_u32 s4, s4, s5
s_add_u32 s4, s4, %d
''' % (20 * AT_PITCH, 80 * AT_PITCH, WS_AT))
a.wvm(tk['polla'])
CA = 'v_cmp_ne_u64 vcc, s[6:7], v[36:37]\nv_cmp_ne_u64 s[34:35], s[6:7], v[38:39]\ns_or_b64 vcc, vcc, s[34:35]'
a(CA); spin('L_sa', FAL0 + '\n' + FAL1, CA)
stamp('aflag')
ta = []
for j in range(20):
    ta.append(a.vmem('buffer_load_short_d16_hi %s, v33, %s, s4 offen sc1' % (v(vA + j), RWS)))
    if j < 19: a('s_add_u32 s4, s4, %d' % AT_PITCH)
acc = accs[1]
for n in range(3):
    for i in range(5):
        a.wlg(rt[5 * n + i])
        for h in range(2):
            r = acc[i] + 2 * h
            a('v_pk_add_f32 %s, %s, %s' % (v(r, 2), v(r, 2), v(vR + 20 * n + 4 * i + 2 * h, 2)))
a('''
v_mul_u32_u24 v34, 1280, v34
v_mul_u32_u24 v32, 40, v32
v_add_u32 v34, v34, v32
s_mul_i32 s4, s79, 1280
s_mul_i32 s5, s11, 160
s_add_u32 s4, s4, s5
''')
vO = 152
for j in range(0, 20, 2):
    r = acc[j // 4] + (j % 4)
    a.wvm(ta[j + 1])
    a('v_pk_add_f32 %s, %s, %s neg_lo:[0,1] neg_hi:[0,1]' % (v(vA + j, 2), v(vA + j, 2), v(r, 2)))
    a('v_pk_fma_f32 %s, %s, v[24:25], %s op_sel_hi:[1,0,1]' % (v(vA + j, 2), v(vA + j, 2), v(r, 2)))
    a('v_cvt_pk_bf16_f32 %s, %s, %s' % (v(vO + j // 2), v(vA + j), v(vA + j + 1)))
    if j == 6: a.vmem('buffer_store_dwordx4 %s, v34, %s, s4 offen' % (v(vO, 4), s(rOUT, 4)))
    if j == 14: a.vmem('buffer_store_dwordx4 %s, v34, %s, s4 offen offset:16' % (v(vO + 4, 4), s(rOUT, 4)))
a.vmem('buffer_store_dwordx2 %s, v34, %s, s4 offen offset:32' % (v(vO + 8, 2), s(rOUT, 4)))
if args.stamps:
    stamp('fin')
    a.wvm0()
    stamp('drain')
    a('''
    s_lshl_b32 s4, s2, 2
    s_add_u32 s4, s4, s8
    s_lshl_b32 s4, s4, 8
    s_add_u32 s4, s4, %d
    v_lshlrev_b32 v32, 3, v1
    s_mov_b64 exec, 0xffffffff
    buffer_store_dwordx2 v[254:255], v32, %s, s4 offen
    ''' % (WS_ST, RWS))
a('L_end:')
a('s_endpgm')
kernel_desc(a, KN, vgpr=512, sgpr=102, accum=256)
LL = ['; @launch grid=(256,1,1) block=(256,1,1) lds=%d' % LDS_SIZE]
wrap = lambda lines: file_text(LL, '\n'.join(lines) + '\n')
lines, size, npro, npad = align(a.lines, wrap)
assert size <= 32 * 9 * 128, size
open(args.o, 'w').write(wrap(lines))
print('code bytes', size, 'promoted', npro, 'padded', npad, 'stamps:', ' '.join(stamp_names))
```

```python
import sys, argparse
sys.path.insert(0, 'exp')
from asmlib import *
from align import align

ap = argparse.ArgumentParser()
ap.add_argument('-o', default='k.s')
ap.add_argument('--stamps', action='store_true')
ap.add_argument('--fine', default='')
ap.add_argument('--dbgK', action='store_true')
ap.add_argument('--pubh', type=int, default=95)
ap.add_argument('--pollh', type=int, default=165)
ap.add_argument('--chkh', type=int, default=192)
ap.add_argument('--w2tail', type=int, default=14)
ap.add_argument('--w2silu', type=int, default=6)
ap.add_argument('--w2step', type=int, default=4)
ap.add_argument('--nh0', type=int, default=8)
ap.add_argument('--pad', type=int, default=0)
ap.add_argument('--dbgt', action='store_true')
args = ap.parse_args()

FSH = 5
FSTR = 1 << FSH
FWSH = 7
WS_FU = 0x00000
WS_FW = 0x20000
WS_FH = 0x40000
WS_FA = 0x60000
WS_UT = 0x100000; UT_PITCH = 4224
WS_AT = 0x500000; AT_PITCH = 4096
WS_W2P = 0x800000
WS_HP = 0x1000000
WS_ST = 0x2000000
WS_DBG = 0x2100000
WS_JUNK = 0x3000000
WS_SIZE = 0x4000000

TP = 272
TABSZ = 53 * TP
SLOT = 28672
L_RING = 4 * TABSZ
SL = [L_RING, L_RING + SLOT, L_RING + 2 * SLOT, 0, SLOT]
L_KL = L_RING + 3 * SLOT
KLSZ = 4608
L_GW = L_KL + 3 * KLSZ
L_DMX = L_GW + 2048
DP = 144
LDS_SIZE = 163840
assert L_DMX + 22 * DP <= LDS_SIZE
L_RED = 0
L_U = 61440
UC = 4160
UCH = 4 * UC


class G(Asm):
    def __init__(self):
        super().__init__()
        self.vm = 0; self.lg = 0; self.vm_done = 0; self.lg_done = 0
    def vmem(self, s_):
        self(s_); self.vm += 1; return self.vm
    def ds(self, s_):
        self(s_); self.lg += 1; return self.lg
    def wvm(self, tok):
        if tok <= self.vm_done: return
        n = min(self.vm - tok, 63)
        assert n >= 0
        self('s_waitcnt vmcnt(%d)' % n); self.vm_done = self.vm - n
    def wlg(self, tok):
        if tok <= self.lg_done: return
        n = min(self.lg - tok, 15)
        self('s_waitcnt lgkmcnt(%d)' % n); self.lg_done = self.lg - n
    def wlg0(self):
        self('s_waitcnt lgkmcnt(0)'); self.lg_done = self.lg
    def wvm0(self):
        self('s_waitcnt vmcnt(0)'); self.vm_done = self.vm
    def save(self): return (self.vm, self.lg, self.vm_done, self.lg_done)
    def restore(self, st): self.vm, self.lg, self.vm_done, self.lg_done = st

def v(i, n=1): return 'v%d' % i if n == 1 else 'v[%d:%d]' % (i, i + n - 1)
def ac(i, n=1): return 'a%d' % i if n == 1 else 'a[%d:%d]' % (i, i + n - 1)
def s(i, n=1): return 's%d' % i if n == 1 else 's[%d:%d]' % (i, i + n - 1)

a = G()
KN = NAME + '_kernel'
kernel_begin(a, KN)

pU, pAre, pAim, pBre, pBim, pCre, pCim, pLdt = 16, 18, 20, 22, 24, 26, 28, 30
pDsk, pX, pW1, pW2, pGW, pOut, pDbg, pWs = 32, 34, 36, 38, 40, 42, 44, 46
rU, rW1, rW2, rWS, rOUT, rGW = 48, 52, 56, 60, 64, 68
RWS = s(rWS, 4)
stamp_names = []
def stamp(name, fine=None):
    if not args.stamps: return
    if fine and fine not in args.fine.split(','): return
    i = len(stamp_names); stamp_names.append(name)
    assert i < 32
    a('s_memrealtime s[100:101]')
    a('s_memtime s[0:1]')
    a('s_waitcnt lgkmcnt(0)'); a.lg_done = a.lg
    a('v_writelane_b32 v254, s100, %d' % i)
    a('v_writelane_b32 v255, s0, %d' % i)

vDX, vDW, vGW0, vXA, vXB, vWB, vGWc, vGACC, vPOLL = 4, 8, 11, 12, 16, 20, 23, 24, 28
vGXA, vGXB = 44, 46

a('s_cmp_ge_u32 s2, 256')
a('s_cbranch_scc1 L_end')
a('s_load_dwordx16 s[16:31], s[0:1], 0')
a('s_load_dwordx16 s[32:47], s[0:1], 64')
a('s_memrealtime s[6:7]')
a('s_getpc_b64 s[4:5]')
a('L_pc:')
a('''
s_lshr_b32 s86, s2, 3
s_mul_i32 s87, s86, 9
v_min_u32 v32, 8, v0
v_add_u32 v32, s87, v32
v_lshlrev_b32 v32, 7, v32
v_min_u32 v32, L_end-L_pc, v32
''')
a.vmem('global_load_dword v33, v32, s[4:5]')
if args.stamps:
    a('v_mov_b32 v254, 0\nv_mov_b32 v255, 0')
a('''
v_and_b32 v1, 63, v0
v_lshrrev_b32 v34, 6, v0
v_lshlrev_b32 v2, 4, v1
v_readfirstlane_b32 s8, v34
s_and_b32 s4, s2, 7            ; xcd
s_lshr_b32 s92, s2, 4
s_lshl_b32 s92, s92, 3
s_add_u32 s92, s92, s4         ; cw
s_and_b32 s93, s86, 1          ; small ?
s_xor_b32 s77, s93, 1          ; big
s_mul_i32 s14, s92, 5
s_mul_i32 s94, s93, 3
s_add_u32 s14, s14, s94        ; c0
s_add_u32 s15, s14, 1          ; c1
s_add_u32 s3, s15, s77
s_cmp_eq_u32 s8, 0
s_cselect_b32 s94, s14, s3
s_cmp_eq_u32 s8, 1
s_cselect_b32 s94, s15, s94
s_cmp_eq_u32 s8, 3
s_cselect_b32 s95, s15, s94
s_cselect_b32 s96, 256, 0
s_cselect_b32 s97, 128, 0
v_cmp_gt_u32 vcc, 32, v1
v_mov_b32 v35, s94
v_mov_b32 v36, s95
v_cndmask_b32 v64, v35, v36, vcc
v_mov_b32 v35, s97
v_mov_b32 v36, s96
v_cndmask_b32 v63, v35, v36, vcc
v_mul_u32_u24 v35, 384, v64
v_add_u32 v63, v63, v35
v_lshl_add_u32 v63, v1, 2, v63
v_lshlrev_b32 v64, 1, v64
v_mov_b32 v3, 0
s_lshr_b32 s9, s4, 1
s_lshl_b32 s9, s9, 2
s_lshr_b32 s98, s86, 3         ; rl
s_add_u32 s9, s9, s98          ; rb
s_and_b32 s87, s4, 1
s_and_b32 s88, s86, 7          ; cl
s_lshl_b32 s10, s87, 3
s_add_u32 s10, s10, s88        ; cb
s_mul_i32 s13, s88, 5
s_lshr_b32 s13, s13, 2
s_mul_i32 s90, s98, 10
s_lshr_b32 s90, s90, 2
s_add_u32 s13, s13, s90
s_add_u32 s13, s13, s87
s_cmp_ge_u32 s13, 10
s_cselect_b32 s90, 10, 0
s_sub_u32 s13, s13, s90
s_mov_b32 s84, s13
s_mov_b32 s81, s13
s_mul_i32 s78, s8, 7168
''')
a('''
v_lshrrev_b32 v36, 3, v1
s_lshl_b32 s4, s9, 7
s_lshl_b32 s5, s8, 5
s_add_u32 s4, s4, s5
v_add_u32 v36, s4, v36
v_mul_u32_u24 v36, 1280, v36
v_and_b32 v37, 7, v1
v_lshrrev_b32 v38, 4, v1
v_xor_b32 v37, v37, v38
v_lshlrev_b32 v37, 4, v37
v_add_u32 v4, v36, v37
v_xor_b32 v37, 64, v37
v_add_u32 v5, v36, v37
v_add_u32 v5, %d, v5
v_add_u32 v6, %d, v4
v_add_u32 v7, %d, v5
''' % (10240 - 1024, 2 * (10240 - 1024), 2 * (10240 - 1024)))
a('s_waitcnt lgkmcnt(0)')
stamp('karg')
vRAW, vDT, vP2, vDSK = 48, 54, 56, 62
for j, ptr in enumerate((pAre, pAim, pBre, pBim, pCre, pCim)):
    a.vmem('global_load_dword %s, v63, %s' % (v(vRAW + j), s(ptr, 2)))
tPAR = a.vmem('global_load_short_d16_hi %s, v64, %s' % (v(vDT), s(pLdt, 2)))
srd(a, rU, pU, 2621440)
srd(a, rW1, pW1, 640 * 1536 * 2)

def dma_setup():
    a('s_lshl_b32 s79, s81, 7')
    a('s_mul_i32 s80, s81, %d' % (64 * 3072))
    a('s_add_u32 s81, s81, 1')
    a('s_cmp_ge_u32 s81, 10')
    a('s_cselect_b32 s81, 0, s81')
tCH = {}; tCHX = {}
def dma_ops(c, restore_m0=False):
    ops = []
    for j in range(7):
        def f(j=j):
            if j == 0: dma_setup()
            if restore_m0 or j in (0, 4):
                off = SL[c % 5] + (4096 if j >= 4 else 0)
                a('s_add_u32 m0, s78, %d' % off if off else 's_mov_b32 m0, s78')
                a('s_nop 0')
            if j < 4:
                t = a.vmem('buffer_load_dwordx4 %s, %s, s79 offen offset:%d lds' % (v(vDX + j), s(rU, 4), 1024 * j))
                tCHX[c] = t
            else:
                t = a.vmem('buffer_load_dwordx4 %s, %s, s80 offen offset:%d lds' % (v(vDW + j - 4), s(rW1, 4), 1024 * (j - 4)))
                if j == 6: tCH[c] = t
            if restore_m0: a('s_mov_b32 m0, s83')
        ops.append(f)
    return ops
c0ops = dma_ops(0)
for f in c0ops[:4]: f()
a('s_mov_b32 s82, s80')
a('''
s_mul_i32 s4, s8, %d
s_mul_i32 s5, s10, 192
s_add_u32 s4, s4, s5
''' % (16 * 3072))
for j in range(3):
    a('''
    v_add_u32 v36, %d, v1
    v_mul_u32_u24 v37, 5462, v36
    v_lshrrev_b32 v37, 16, v37
    v_mul_u32_u24 v38, 12, v37
    v_sub_u32 v38, v36, v38
    v_mul_u32_u24 v37, 3072, v37
    v_lshl_add_u32 v37, v38, 4, v37
    v_add_u32 v37, s4, v37
    v_subrev_u32 %s, %d, v37
    ''' % (64 * j, v(vDW + j), 1024 * j))
srd(a, rW2, pW2, 640 * 1536 * 2)
srd(a, rWS, pWs, WS_SIZE)
srd(a, rOUT, pOut, 2621440)
srd(a, rGW, pGW, 1280)
a('''
s_or_b32 s6, s6, 1
s_or_b32 s4, s2, s8
s_cmp_lg_u32 s4, 0
s_cbranch_scc1 L_nononce
v_mov_b32 v36, s6
v_mov_b32 v37, s7
global_store_dwordx2 v3, v[36:37], s[44:45] sc1
L_nononce:
''')
a('''
s_lshr_b32 s12, s88, 2         ; half
s_and_b32 s89, s88, 3
s_lshl_b32 s11, s87, 2
s_add_u32 s11, s11, s89        ; cb8
s_add_u32 s76, s8, s89
s_and_b32 s76, s76, 3          ; own tile
s_cmp_eq_u32 s89, 3
s_cselect_b32 s91, 1, 0
s_cmp_eq_u32 s87, 0
s_cselect_b32 s91, 1, s91      ; transposer predicate
s_lshl_b32 s92, s92, 1
s_add_u32 s92, s92, s93        ; o
s_lshl_b32 s99, s98, 1
s_add_u32 s99, s99, s12        ; sharer index of the W2' slice
s_lshl_b32 s85, s8, 8
s_sub_u32 s85, s85, 256
s_add_u32 s85, s85, s2         ; W2 job id
s_mul_i32 s83, s8, %d
s_mov_b32 s72, 0x3fb8aa3b
s_mov_b32 s73, 0x3e22f983
s_mov_b32 s74, 0x4138aa3b
s_mov_b32 s75, 0x3fa2f983
s_mov_b32 s93, 0xffff0000
''' % TABSZ)

vKA, vKB, vDMP, vE = 68, 69, 70, 72
a('''
v_and_b32 v36, 31, v1
v_lshrrev_b32 v37, 5, v1
v_mul_u32_u24 v38, %d, v36
v_lshl_add_u32 v38, v37, 4, v38
v_add_u32 v68, s83, v38
v_min_u32 v38, 20, v36
v_add_u32 v38, 32, v38
v_mul_u32_u24 v38, %d, v38
v_lshl_add_u32 v38, v37, 4, v38
v_add_u32 v69, s83, v38
v_min_u32 v38, 21, v36
v_mul_u32_u24 v38, %d, v38
v_lshl_add_u32 v70, v37, 4, v38
''' % (TP, TP, DP))
a('''
v_lshrrev_b32 v38, 1, v1
v_and_b32 v38, 7, v38
v_xor_b32 v38, v38, v37
v_lshlrev_b32 v38, 4, v38
v_lshl_add_u32 v38, v36, 7, v38
v_add_u32 v12, s78, v38
v_xor_b32 v13, 32, v12
v_xor_b32 v14, 64, v12
v_xor_b32 v15, 96, v12
''')
for k in range(4): a('v_add_u32 %s, %d, %s' % (v(vXB + k), SL[1], v(vXA + k)))
a('''
v_bfe_u32 v38, v1, 2, 2
v_lshl_add_u32 v38, v37, 3, v38
v_mul_u32_u24 v38, 192, v38
v_bfe_u32 v39, v1, 4, 1
v_lshl_add_u32 v38, v39, 5, v38
v_and_b32 v39, 3, v1
v_lshl_add_u32 v38, v39, 3, v38
v_add_u32 v20, %d, v38
v_add_u32 v21, %d, v38
v_add_u32 v22, %d, v38
''' % (4096, 4096 + SL[0], 4096 + SL[2]))
a('''
s_lshl_b32 s4, s12, 1
s_lshr_b32 s5, s76, 1
s_add_u32 s4, s4, s5
s_mul_i32 s4, s4, 7168
s_and_b32 s5, s76, 1
s_lshl_b32 s5, s5, 11
s_add_u32 s4, s4, s5
v_and_b32 v38, 15, v1
v_lshrrev_b32 v39, 4, v1
v_lshrrev_b32 v40, 1, v38
v_xor_b32 v40, v40, v39
v_lshlrev_b32 v40, 4, v40
v_lshl_add_u32 v40, v38, 7, v40
v_add_u32 v44, s4, v40
v_xor_b32 v45, 64, v44
v_add_u32 v46, %d, v44
v_add_u32 v47, %d, v45
v_lshlrev_b32 v11, 4, v39
v_add_u32 v11, %d, v11
v_mov_b32 v24, 0
v_mov_b32 v25, 0
v_mov_b32 v26, 0
v_mov_b32 v27, 0
''' % (SL[1], SL[1], L_GW))
a('''
v_and_b32 v38, 1, v1
v_lshrrev_b32 v39, 1, v1
v_lshlrev_b32 v39, 2, v39
v_mul_u32_u24 v40, %d, v38
v_add_u32 v72, v40, v39
v_mul_u32_u24 v40, %d, v38
v_add_u32 v73, v40, v39
v_add_u32 v73, %d, v73
v_add_u32 v41, 1, v1
v_and_b32 v38, 1, v41
v_lshrrev_b32 v39, 1, v41
v_lshlrev_b32 v39, 2, v39
v_mul_u32_u24 v40, %d, v38
v_add_u32 v74, v40, v39
v_add_u32 v74, %d, v74
v_cmp_eq_u32 vcc, 63, v1
v_mov_b32 v42, %d
s_nop 0
v_cndmask_b32 v74, v74, v42, vcc
v_lshrrev_b32 v38, 5, v1
v_and_b32 v39, 31, v1
v_mul_u32_u24 v38, %d, v38
v_lshl_add_u32 v75, v39, 2, v38
v_add_u32 v75, %d, v75
v_lshrrev_b32 v38, 5, v41
v_and_b32 v39, 31, v41
v_mul_u32_u24 v38, %d, v38
v_lshl_add_u32 v76, v39, 2, v38
v_add_u32 v76, %d, v76
v_lshrrev_b32 v38, 4, v1
v_and_b32 v39, 15, v1
v_mul_u32_u24 v38, %d, v38
v_lshl_add_u32 v77, v39, 3, v38
v_add_u32 v77, %d, v77
v_lshrrev_b32 v38, 4, v41
v_and_b32 v39, 15, v41
v_mul_u32_u24 v38, %d, v38
v_lshl_add_u32 v78, v39, 3, v38
v_add_u32 v78, %d, v78
''' % (4 * DP, 2 * DP, 8 * DP, 2 * DP, 8 * DP, 12 * DP, 2 * DP, 12 * DP, 2 * DP, 12 * DP, DP, 16 * DP, DP, 16 * DP))

a.vmem('global_load_short_d16_hi %s, v64, %s' % (v(vDSK), s(pDsk, 2)))
nafter = a.vm - tPAR
a('''
v_min_u32 v36, 59, v1
v_mul_u32_u24 v37, 5462, v36
v_lshrrev_b32 v37, 16, v37
v_mul_u32_u24 v38, 12, v37
v_sub_u32 v38, v36, v38
v_mul_u32_u24 v37, 3072, v37
v_lshl_add_u32 v65, v38, 7, v37
s_lshl_b32 s95, s86, 2
s_add_u32 s95, s95, s8
s_mul_i32 s95, s95, %d
s_mul_i32 s96, s87, 1536
s_add_u32 s95, s95, s96
''' % (5 * 3072))
W1PF = 'buffer_load_dword v67, v65, %s, s95 offen' % s(rW1, 4)
a('''
s_cmp_eq_u32 s8, 0
s_cbranch_scc1 L_r0
s_cmp_eq_u32 s8, 3
s_cbranch_scc1 L_r3
s_cmp_ge_u32 s85, 384
s_cbranch_scc1 L_rnone
s_lshr_b32 s4, s85, 3
s_mul_i32 s4, s4, %d
s_and_b32 s5, s85, 7
s_mul_i32 s5, s5, 160
s_add_u32 s4, s4, s5
s_mul_i32 s5, s8, 5120
s_add_u32 m0, s5, %d
''' % (32 * 1280, L_KL - 5120))
for j in range(5):
    a('''
    v_add_u32 v36, %d, v1
    v_mul_u32_u24 v37, 6554, v36
    v_lshrrev_b32 v37, 16, v37
    v_mul_u32_u24 v38, 10, v37
    v_sub_u32 v38, v36, v38
    v_mul_u32_u24 v37, 1280, v37
    v_lshl_add_u32 v37, v38, 4, v37
    buffer_load_dwordx4 v37, %s, s4 offen lds
    s_add_u32 m0, m0, 1024
    ''' % (64 * j, s(rW2, 4)))
a(W1PF)
a('s_waitcnt vmcnt(%d)' % (nafter + 6))
a('s_branch L_rdone')
a('L_r0:')
a('s_mul_i32 s4, s14, 384')
a('s_add_u32 s4, s4, 256')
a('v_lshlrev_b32 v36, 1, v1')
a('v_add_u32 v36, s4, v36')
for j, ptr in enumerate((pAre, pAim, pBre, pBim, pCre, pCim)):
    a('global_load_short_d16_hi %s, v36, %s' % (v(vP2 + j), s(ptr, 2)))
a(W1PF)
a('s_waitcnt vmcnt(%d)' % (nafter + 7))
a('s_branch L_rdone')
a('L_r3:')
a('s_mov_b32 m0, %d' % L_GW)
a('s_nop 0')
a('buffer_load_dwordx4 v2, %s, 0 offen lds' % s(rGW, 4))
a('buffer_load_dwordx4 v2, %s, 0 offen offset:1024 lds' % s(rGW, 4))
a('''
s_mul_i32 s4, s98, 10
s_lshr_b32 s4, s4, 2
s_add_u32 s4, s4, s87
s_add_u32 s4, s4, 4
s_cmp_ge_u32 s4, 10
s_cselect_b32 s5, 10, 0
s_sub_u32 s4, s4, s5
s_cmp_ge_u32 s4, 5
s_cselect_b32 s5, 5, 0
s_sub_u32 s4, s4, s5           ; missing chunk mod 5
s_lshl_b32 s4, s4, 7
s_lshl_b32 s5, s9, 3
s_add_u32 s5, s5, s88
s_mul_i32 s5, s5, %d
s_add_u32 s4, s4, s5
v_and_b32 v36, 31, v1
v_mul_u32_u24 v36, 640, v36
buffer_load_dword v66, v36, %s, s4 offen
''' % (16 * 1280, s(rU, 4)))
a(W1PF)
a('s_waitcnt vmcnt(%d)' % (nafter + 4))
a('s_branch L_rdone')
a('L_rnone:')
a(W1PF)
a('s_waitcnt vmcnt(%d)' % (nafter + 1))
a('L_rdone:')
a.vm_done = tPAR
a.vm += 1; tROLE = a.vm
a.vm += 1
stamp('par')

vA1, vA2 = 80, 96
vSET = [112, 118]
vW = 124
def cmul(d, x, y, t):
    return ('v_pk_mul_f32 %s, %s, %s op_sel:[0,0] op_sel_hi:[1,0]' % (v(t, 2), v(x, 2), v(y, 2)),
            'v_pk_fma_f32 %s, %s, %s, %s op_sel:[1,1,0] op_sel_hi:[0,1,1] neg_lo:[1,0,0]' % (v(d, 2), v(x, 2), v(y, 2), v(t, 2)))

def kgen_setup(k, tmp):
    Q1, Z, S0 = vSET[k & 1], vSET[k & 1] + 2, vSET[k & 1] + 4
    if k < 2:
        P = tmp
        if k == 0:
            a('v_mul_f32 %s, s72, %s' % (v(vDT), v(vDT)))
            a('v_exp_f32 %s, %s' % (v(vDT), v(vDT)))
        for j in range(6):
            a(('v_lshlrev_b32 %s, 16, %s' if k == 0 else 'v_and_b32 %s, s93, %s') % (v(P + j), v(vRAW + j)))
            if k == 0 and j == 1: a('v_cvt_pk_bf16_f32 %s, %s, %s' % (v(vDT), v(vDT), v(vDT)))
            if k == 0 and j == 3: a('v_and_b32 %s, s93, %s' % (v(vDT), v(vDT)))
    else:
        P = vP2
    l1, l8, cs1, cs8, m, bc, t0 = [tmp + 6 + 2 * i for i in range(7)]
    m0_, m1_ = cmul(bc, P + 2, P + 4, t0)
    a('v_pk_mul_f32 %s, %s, %s op_sel_hi:[1,0]' % (v(l8, 2), v(P, 2), v(vDT, 2)))
    a(m0_)
    a('v_pk_mul_f32 %s, %s, s[72:73]' % (v(l1, 2), v(l8, 2)))
    a('v_pk_mul_f32 %s, %s, s[74:75]' % (v(l8, 2), v(l8, 2)))
    a(m1_)
    a('v_fract_f32 %s, %s' % (v(l1 + 1), v(l1 + 1)))
    a('v_fract_f32 %s, %s' % (v(l8 + 1), v(l8 + 1)))
    a('v_exp_f32 %s, %s' % (v(m + 1), v(l8)))
    a('v_exp_f32 %s, %s' % (v(m), v(l1)))
    a('v_cos_f32 %s, %s' % (v(cs8), v(l8 + 1)))
    a('v_sin_f32 %s, %s' % (v(cs8 + 1), v(l8 + 1)))
    a('v_cos_f32 %s, %s' % (v(cs1), v(l1 + 1)))
    a('v_sin_f32 %s, %s' % (v(cs1 + 1), v(l1 + 1)))
    a('v_pk_mul_f32 %s, %s, %s op_sel:[0,1] op_sel_hi:[1,1]' % (v(Q1, 2), v(cs8, 2), v(m, 2)))
    a('v_pk_mul_f32 %s, %s, %s op_sel_hi:[1,0]' % (v(S0, 2), v(bc, 2), v(vDT, 2)))
    a('v_pk_mul_f32 %s, %s, %s op_sel_hi:[1,0]' % (v(Z, 2), v(cs1, 2), v(m, 2)))

GROUPS = [[('Q2','Q1','Q1'),('S1','S0','Z')], [('Q4','Q2','Q2'),('Q3','Q2','Q1'),('S2','S1','Z')],
          [('Q8','Q4','Q4'),('Q5','Q4','Q1'),('S3','S2','Z'),('Q6','Q4','Q2')],
          [('Q16','Q8','Q8'),('Q7','Q4','Q3'),('S4','S3','Z'),('Q9','Q8','Q1')],
          [('Q32','Q16','Q16'),('Q10','Q8','Q2'),('S5','S4','Z'),('Q11','Q8','Q3')],
          [('S8','S0','Q32'),('Q12','Q8','Q4'),('S6','S5','Z'),('Q13','Q8','Q5')],
          [('S12','S8','Q32'),('S10','S4','Q32'),('S7','S6','Z'),('Q14','Q8','Q6')],
          [('S14','S12','Q32'),('S13','S10','Q32'),('S9','S2','Q32'),('Q15','Q8','Q7')],
          [('S16','S14','Q32'),('S15','S13','Q32'),('S11','S6','Q32'),('Q17','Q16','Q1')],
          [('S17','S16','Q32'),('Q18','Q16','Q2'),('Q19','Q16','Q3'),('Q20','Q16','Q4')],
          [('S18','S17','Q32'),('Q21','Q16','Q5'),('Q22','Q16','Q6'),('Q23','Q16','Q7')],
          [('S19','S18','Q32'),('Q24','Q16','Q8'),('Q25','Q16','Q9'),('Q26','Q16','Q10')],
          [('S20','S19','Q32'),('Q27','Q16','Q11'),('Q28','Q16','Q12'),('Q29','Q16','Q13')],
          [('Q30','Q16','Q14'),('Q31','Q16','Q15')]]
def kgen_body(k, side):
    R = {'Q1': vSET[k & 1], 'Z': vSET[k & 1] + 2, 'S0': vSET[k & 1] + 4}
    tmps = [vW + 2 * i for i in range(4)]
    cv = [vW + 8 + i for i in range(10)]
    nxt = vW + 18
    pend = ['S0', 'Q1']
    def flush():
        for i, nm in enumerate(pend):
            a('v_cvt_pk_bf16_f32 %s, %s, %s%s' % (v(cv[i]), v(R[nm]), '' if nm[0] == 'Q' else '-', v(R[nm] + 1)))
        for i, nm in enumerate(pend):
            row = int(nm[1:]) + (0 if nm[0] == 'Q' else 32)
            a.ds('ds_write_addtid_b32 %s offset:%d' % (v(cv[i]), row * TP))
        pend.clear()
        if side: side.pop(0)()
    for gi, grp in enumerate(GROUPS):
        ins = []
        for i, (nm, x, y) in enumerate(grp):
            R[nm] = nxt; nxt += 2
            ins.append(cmul(R[nm], R[x], R[y], tmps[i]))
        for m_, f_ in ins: a(m_)
        for m_, f_ in ins: a(f_)
        pend += [nm for nm, _, _ in grp if nm != 'Q32']
        if gi % 2 == 1: flush()
    assert not pend and nxt <= 250
    while side: side.pop(0)()
vFR = 160
def kgen_reads():
    toks = []
    a.wlg0()
    for kk in range(8):
        a.ds('ds_read_b128 %s, %s offset:%d' % (v(vFR + 8 * kk, 4), v(vKA), 32 * kk))
        toks.append(a.ds('ds_read_b128 %s, %s offset:%d' % (v(vFR + 8 * kk + 4, 4), v(vKB), 32 * kk)))
    return toks
def kgen_mfma(toks, first):
    for kk in range(8):
        a.wlg(toks[kk])
        acc = vA1 if kk < 4 else vA2
        c = '0' if (first and kk in (0, 4)) else v(acc, 16)
        a('v_mfma_f32_32x32x16_bf16 %s, %s, %s, %s' % (v(acc, 16), v(vFR + 8 * kk, 4), v(vFR + 8 * kk + 4, 4), c))

def spin(label, load, cmp_):
    a('s_cbranch_vccz %s_ok' % label)
    a('s_mov_b32 s82, 0x40000')
    a('%s_lp:' % label)
    a('s_sleep 1')
    a(load)
    a('s_waitcnt vmcnt(0)')
    a(cmp_)
    a('s_sub_u32 s82, s82, 1')
    a('s_cmp_eq_u32 s82, 0')
    a('s_cbranch_scc1 %s_ok' % label)
    a('s_cbranch_vccnz %s_lp' % label)
    a('%s_ok:' % label)

a('s_mov_b32 m0, s83')
a('v_mov_b32 v36, 0x3f80')
a.ds('ds_write_addtid_b32 v36 offset:0')
kgen_setup(0, vW)
kgen_body(0, [])
NL = 'global_load_dwordx2 %s, v3, s[44:45] sc1' % v(vPOLL, 2)
tNON = a.vmem(NL)
tk0 = kgen_reads()
kgen_setup(1, vW)
kgen_mfma(tk0, True)
stamp('r0')

a.wvm(tROLE)
st = a.save()
a('s_cmp_eq_u32 s91, 0')
a('s_cbranch_scc1 L_notr')
a('''
v_bfe_u32 v36, v1, 2, 2
v_and_b32 v37, 3, v1
v_lshl_add_u32 v38, v37, 3, v36
v_lshrrev_b32 v39, 5, v1
v_bfe_u32 v40, v1, 4, 1
v_lshrrev_b32 v41, 1, v38
v_and_b32 v41, 7, v41
v_xor_b32 v41, v41, v39
v_lshlrev_b32 v41, 4, v41
v_lshl_add_u32 v41, v38, 7, v41
v_lshl_add_u32 v41, v40, 3, v41
v_add_u32 v41, s78, v41
v_xor_b32 v42, 32, v41
v_xor_b32 v43, 64, v41
v_xor_b32 v40, 96, v41
''')
xr = {0: 41, 32: 42, 64: 43, 96: 40}
toks = []
for n in range(4):
    for h in range(2):
        toks.append(a.ds('ds_read_b64_tr_b16 %s, v%d offset:%d' % (v(224 + 4 * n + 2 * h, 2), xr[(32 * n) ^ (32 * h)], SL[0] + 512 * h)))
a('''
v_lshrrev_b32 v38, 4, v1
v_lshl_add_u32 v38, v38, 2, v37
v_mul_u32_u24 v38, %d, v38
v_lshl_add_u32 v36, v36, 4, v38
s_mul_i32 s4, s84, %d
s_lshl_b32 s5, s9, 8
s_add_u32 s4, s4, s5
s_lshl_b32 s5, s8, 6
s_add_u32 s4, s4, s5
s_add_u32 s4, s4, %d
''' % (UT_PITCH, 64 * UT_PITCH, WS_UT + 128))
for n in range(4):
    a.wlg(toks[2 * n + 1])
    a('buffer_store_dwordx4 %s, v36, %s, s4 offen sc1' % (v(224 + 4 * n, 4), RWS))
    a('s_add_u32 s4, s4, %d' % (16 * UT_PITCH))
a('L_notr:')
a.restore(st)
a.vm += 1; tCHORE = a.vm
stamp('chore')
def w0op(j):
    def f():
        a('s_add_u32 m0, s78, %d' % (SL[0] + 4096))
        a('s_nop 0')
        t = a.vmem('buffer_load_dwordx4 %s, %s, s82 offen offset:%d lds' % (v(vDW + j), s(rW1, 4), 1024 * j))
        if j == 2: tCH[0] = t
        a('s_mov_b32 m0, s83')
    return f
nop = lambda: None
kgen_body(1, [nop, nop, nop, nop, w0op(0), w0op(1), w0op(2)])
tk1 = kgen_reads()
a.wvm(tCHORE)
CMP0 = 'v_cmp_eq_u64 vcc, 0, %s' % v(vPOLL, 2)
a(CMP0)
spin('L_sn', NL, CMP0)
a('v_readfirstlane_b32 s6, %s' % v(vPOLL))
a('v_readfirstlane_b32 s7, %s' % v(vPOLL + 1))
def publish(soff_code, skip=None):
    a(soff_code)
    a('s_mov_b64 exec, 1')
    ins = 'buffer_store_dwordx2 v[30:31], v3, %s, s4 offen sc1' % RWS
    if skip: a(ins)
    else: a.vmem(ins)
    a('s_mov_b64 exec, -1')
    if skip: a(skip + ':')
a('v_mov_b32 v30, %s' % v(vPOLL))
a('v_mov_b32 v31, %s' % v(vPOLL + 1))
publish('''
s_cmp_eq_u32 s91, 0
s_cbranch_scc1 L_skfu
s_lshl_b32 s4, s84, 6
s_lshl_b32 s5, s9, 2
s_add_u32 s4, s4, s5
s_add_u32 s4, s4, s8
s_lshl_b32 s4, s4, %d
''' % FSH, 'L_skfu')
kgen_mfma(tk1, False)
stamp('r1')
a('s_cmp_lg_u32 s8, 0')
a('s_cbranch_scc1 L_nor2')
kgen_setup(2, vW)
kgen_body(2, [])
kgen_mfma(kgen_reads(), False)
dma_setup(); dma_setup()
a('s_branch L_r2done')
a('L_nor2:')
st = a.save()
a('''
s_cmp_ge_u32 s85, 384
s_cbranch_scc1 L_now2
v_lshrrev_b32 v36, 5, v1
v_bfe_u32 v37, v1, 4, 1
v_bfe_u32 v38, v1, 2, 2
v_lshl_add_u32 v38, v37, 2, v38
v_lshl_add_u32 v38, v36, 4, v38
v_mul_u32_u24 v38, 160, v38
v_and_b32 v39, 3, v1
v_mul_u32_u24 v39, 40, v39
v_add_u32 v38, v38, v39
s_mul_i32 s4, s8, 5120
s_add_u32 s4, s4, %d
v_add_u32 v38, s4, v38
''' % (L_KL - 5120))
toks = []
for i in range(5):
    for h in range(2):
        toks.append(a.ds('ds_read_b64_tr_b16 %s, v38 offset:%d' % (v(140 + 4 * i + 2 * h, 2), 8 * i + 1280 * h)))
a('''
s_and_b32 s4, s85, 7
s_mul_i32 s4, s4, 48
s_lshr_b32 s5, s85, 3
s_add_u32 s4, s4, s5
s_mul_i32 s4, s4, 5120
s_add_u32 s4, s4, %d
s_add_u32 s5, s4, 4096
''' % WS_W2P)
for i in range(5):
    a.wlg(toks[2 * i + 1])
    if i < 4: a('buffer_store_dwordx4 %s, v2, %s, s4 offen offset:%d sc1' % (v(140 + 4 * i, 4), RWS, 1024 * i))
    else: a('buffer_store_dwordx4 %s, v2, %s, s5 offen sc1' % (v(140 + 4 * i, 4), RWS))
a('s_nop 0')
a('L_now2:')
a.restore(st)

a.vm += 1; tW2C = a.vm
a('s_mul_i32 s4, s8, %d' % (32 * 1280))
for j in range(4): a('v_subrev_u32 %s, s4, %s' % (v(32 + j), v(vDX + j)))
a('s_mul_i32 s4, s8, %d' % (16 * 3072))
for j in range(3): a('v_subrev_u32 %s, s4, %s' % (v(40 + j), v(vDW + j)))
for c in (1, 2):
    ops = dma_ops(c)
    ops[0]()
    a('s_cmp_lg_u32 s8, %d' % (c + 1))
    a('s_cbranch_scc1 L_nosh%d' % c)
    a('s_mov_b32 m0, %d' % SL[c])
    a('s_nop 0')
    for j in range(4): a('buffer_load_dwordx4 %s, %s, s79 offen offset:%d lds' % (v(32 + j), s(rU, 4), 1024 * j))
    a('s_mov_b32 m0, %d' % (SL[c] + 4096))
    a('s_nop 0')
    for j in range(3): a('buffer_load_dwordx4 %s, %s, s80 offen offset:%d lds' % (v(40 + j), s(rW1, 4), 1024 * j))
    a('s_add_u32 m0, s78, %d' % SL[c])
    a('s_nop 0')
    a('L_nosh%d:' % c)
    for f in ops[1:]: f()
a('L_r2done:')
a('v_add_u32 v36, s83, %s' % v(vDMP))
a('s_nop 7\ns_nop 3')
a('s_cmp_eq_u32 s8, 3')
a('s_cbranch_scc1 L_d3')
for i in range(8): a('v_pk_add_f32 %s, %s, %s' % (v(vA2 + 2 * i, 2), v(vA2 + 2 * i, 2), v(vA1 + 2 * i, 2)))
a('s_branch L_dj')
a('L_d3:')
a('v_add_u32 v37, %d, %s' % (L_DMX, v(vDMP)))
for i in range(4): a('ds_write_b128 v37, %s offset:%d' % (v(vA1 + 4 * i, 4), 32 * i))
a('L_dj:')
for i in range(4): a('ds_write_b128 v36, %s offset:%d' % (v(vA2 + 4 * i, 4), 32 * i))
a.wlg0()
a('s_barrier')
stamp('dump')
a('s_cmp_eq_u32 s8, 3')
a('s_cbranch_scc1 L_noexp')
def gather(dst, base, ad):
    for i in range(7): a('v_add_u32 %s, %s, %s' % (v(ad + i), base, v(vE + i)))
    P4 = DP // 4
    a('ds_read2_b32 %s, %s offset0:0 offset1:%d' % (v(dst, 2), v(ad), P4))
    a('ds_read2_b32 %s, %s offset0:%d offset1:%d' % (v(dst + 2, 2), v(ad), 2 * P4, 3 * P4))
    a('ds_read2_b32 %s, %s offset0:0 offset1:%d' % (v(dst + 4, 2), v(ad + 1), P4))
    a('ds_read2_b32 %s, %s offset0:0 offset1:%d' % (v(dst + 6, 2), v(ad + 3), P4))
    a('ds_read_b64 %s, %s' % (v(dst + 8, 2), v(ad + 5)))
    a('ds_read_b32 %s, %s' % (v(dst + 10), v(ad + 2)))
    a('ds_read_b32 %s, %s' % (v(dst + 11), v(ad + 4)))
    a('ds_read_b32 %s, %s' % (v(dst + 12), v(ad + 6)))
gather(112, 's83', 164)
a('''
v_cmp_eq_u32 vcc, 0, v1
s_mul_i32 s4, s8, %d
s_add_u32 s4, s4, %d
v_cndmask_b32 v36, 0, %s, vcc
v_lshlrev_b32 v37, 3, v1
v_add_u32 v37, s4, v37
v_add_u32 v38, s4, v2
v_lshlrev_b32 v39, 5, v1
v_add_u32 v39, s4, v39
v_mov_b32 v40, 0
v_mov_b32 v41, 0
''' % (KLSZ, L_KL, v(vDSK)))
a('s_cmp_eq_u32 s8, 0')
a('s_cbranch_scc1 L_exp1')
a('s_cmp_eq_u32 s8, 1')
a('s_mov_b32 s4, %d' % (3 * TABSZ))
a('s_cselect_b32 s4, %d, s4' % L_DMX)
gather(128, 's4', 172)
a('s_waitcnt lgkmcnt(0)')
for i in range(0, 12, 2): a('v_pk_add_f32 %s, %s, %s' % (v(112 + i, 2), v(112 + i, 2), v(128 + i, 2)))
a('v_add_f32 v124, v124, v140')
a('L_exp1:')
a('s_waitcnt lgkmcnt(0)')
a('v_add_f32 v112, v112, v36')
cv = lambda d, x, y: a('v_cvt_pk_bf16_f32 v%d, v%d, v%d' % (d, x, y))
cv(146, 116, 116); cv(147, 117, 122)
cv(148, 118, 118); cv(149, 118, 119); cv(150, 119, 119); cv(151, 123, 123)
cv(152, 120, 120); cv(153, 120, 120); cv(154, 120, 121); cv(155, 121, 121)
cv(156, 121, 121); cv(157, 121, 121); cv(158, 124, 124); cv(159, 124, 124)
cv(144, 112, 113); cv(145, 114, 115)
a('ds_write_b64 v37, v[40:41]')
a('ds_write_b64 v37, v[146:147] offset:1024')
a('ds_write_b128 v38, v[148:151] offset:1536')
a('ds_write_b128 v39, v[152:155] offset:2560')
a('ds_write_b128 v39, v[156:159] offset:2576')
a('ds_write_b64 v37, v[144:145] offset:512')
if args.dbgK:
    a('s_waitcnt lgkmcnt(0)')
    a('s_mul_i32 s5, s94, 4096')
    a('s_add_u32 s5, s5, %d' % WS_DBG)
    for i in range(4):
        a('ds_read_b128 v[160:163], v38 offset:%d' % (512 + 1024 * i))
        a('s_waitcnt lgkmcnt(0)')
        a('buffer_store_dwordx4 v[160:163], v2, %s, s5 offen offset:%d' % (RWS, 1024 * i))
        a('s_waitcnt vmcnt(0)')
a('L_noexp:')
stamp('exp')

vACC = 48
vF = [96, 112, 128]
vGF = 144
vUL = 160
def xbase(regA, regB, slot):
    return (regB, SL[slot] - SL[1]) if slot in (1, 2) else (regA, SL[slot])
def g1_reads(n):
    c, kk = divmod(n, 4); slot = c % 5; f = vF[n % 3]
    r, off = xbase(vXA + kk, vXB + kk, slot)
    ops = [('x', 'ds_read_b128 %s, %s offset:%d' % (v(f, 4), v(r), off))]
    wb, wo = {0: (vWB + 1, 0), 1: (vWB + 1, SLOT), 2: (vWB + 2, 0), 3: (vWB, 0), 4: (vWB, SLOT)}[slot]
    for j in range(3):
        for h in range(2):
            ops.append(('w%d' % j, 'ds_read_b64_tr_b16 %s, %s offset:%d' % (v(f + 4 + 4 * j + 2 * h, 2), v(wb), wo + kk * 7168 + h * 768 + 64 * j)))
    return ops

a('s_cmp_lg_u32 s8, 0')
a('s_cbranch_scc1 L_w0w')
a('s_waitcnt vmcnt(0)')
a('L_w0w:')
a.wvm(tW2C)
publish('''
s_cmp_ge_u32 s85, 384
s_cbranch_scc1 L_skfw
s_and_b32 s4, s85, 7
s_lshl_b32 s4, s4, 6
s_lshr_b32 s5, s85, 3
s_add_u32 s4, s4, s5
s_lshl_b32 s4, s4, %d
s_add_u32 s4, s4, %d
''' % (FWSH, WS_FW), 'L_skfw')
a('s_barrier')
a('s_lshl_b32 s4, s13, 7')
a('v_add_u32 %s, s4, %s' % (v(vGWc), v(vGW0)))
tok = {}
for n in (0, 1):
    tok[n] = {}
    for nm, ins in g1_reads(n): tok[n][nm] = a.ds(ins)

FUL = 'buffer_load_dwordx2 %s, v32, %s, 0 offen sc1' % (v(vPOLL, 2), RWS)
FWL = 'buffer_load_dwordx2 v[34:35], v33, %s, s86 offen sc1' % RWS
tk = {}
def w2_load(n):
    def f():
        if n % 4 == 0 and n > 0: a('s_add_u32 s87, s87, 4096')
        tk['w2'] = a.vmem('buffer_load_dwordx4 %s, v2, %s, s87 offen offset:%d sc1' % (ac(4 * n, 4), RWS, 1024 * (n % 4)))
    return f
def u_load(ch, j):
    def f():
        r = vUL + 8 * ch
        if j == 0: a.vmem('buffer_load_dwordx4 %s, v2, %s, s%d offen offset:4 sc1' % (v(r + 4, 4), RWS, 88 + ch))
        else: tk['u%d' % ch] = a.vmem('buffer_load_dword %s, v2, %s, s%d offen sc1' % (v(r + 3), RWS, 88 + ch))
    return f
def polls():
    a('''
    v_min_u32 v33, 11, v1
    v_lshlrev_b32 v33, %d, v33
    s_lshl_b32 s86, s11, 6
    s_mul_i32 s87, s8, 12
    s_add_u32 s86, s86, s87
    s_lshl_b32 s86, s86, %d
    s_add_u32 s86, s86, %d
    ''' % (FWSH, FWSH, WS_FW))
    a.vmem(FWL)
def polls2():
    a('''
    s_and_b32 s34, s14, 0x3c0
    s_and_b32 s35, s3, 0x3c0
    s_sub_u32 s35, s35, s34
    s_lshl_b32 s4, s8, 4
    s_add_u32 s34, s34, s4
    v_bfe_u32 v32, v1, 4, 1
    v_mul_u32_u24 v32, s35, v32
    v_and_b32 v36, 15, v1
    v_add3_u32 v32, v32, v36, s34
    v_lshlrev_b32 v32, %d, v32
    ''' % FSH)
    tk['poll'] = a.vmem(FUL)
def check_polls():
    a.wvm(tk['poll'])
    c3 = 'v_cmp_ne_u64 vcc, s[6:7], v[34:35]'
    a(c3); spin('L_sw', FWL, c3)
    c1 = 'v_cmp_ne_u64 vcc, s[6:7], %s' % v(vPOLL, 2)
    a(c1); spin('L_su0', FUL, c1)
def after_polls():
    a('''
    s_lshl_b32 s4, s8, 10
    s_add_u32 s4, s4, %d
    s_mul_i32 s88, s14, %d
    s_add_u32 s88, s88, s4
    s_mul_i32 s89, s15, %d
    s_add_u32 s89, s89, s4
    s_mul_i32 s90, s3, %d
    s_add_u32 s90, s90, s4
    s_mul_i32 s87, s11, 48
    s_mul_i32 s4, s8, 12
    s_add_u32 s87, s87, s4
    s_mul_i32 s87, s87, 5120
    s_add_u32 s87, s87, %d
    s_mul_i32 s4, s99, %d
    s_add_u32 s4, s4, s87
    v_min_u32 v33, 59, v1
    v_lshlrev_b32 v33, 7, v33
    ''' % (WS_UT + 128 - 4, UT_PITCH, UT_PITCH, UT_PITCH, WS_W2P, 60 * 128))
    a.vmem('buffer_load_dword v34, v33, %s, s4 offen sc1' % RWS)
def ustage_setup():
    a('''
    v_lshlrev_b32 v37, 4, v0
    v_add_u32 v37, %d, v37
    v_cmp_eq_u32 vcc, 0, v0
    v_mul_u32_u24 v40, 13108, v1
    v_lshrrev_b32 v40, 16, v40
    v_cndmask_b32 v38, -1, v3, vcc
    v_mul_u32_u24 v41, 5, v40
    v_sub_u32 v41, v1, v41
    v_mul_u32_u24 v40, %d, v40
    v_lshl_add_u32 v40, v41, 3, v40
    v_mov_b32 v42, 0
    v_mov_b32 v43, 0
    ''' % (L_U + 32, UC))
def ustage_pad():
    a('s_cmp_lg_u32 s8, 0')
    a('s_cbranch_scc1 L_nopad')
    a('s_mov_b32 exec_hi, 0x0fffffff')
    a('ds_write_b64 v40, v[42:43] offset:%d' % L_U)
    a('s_mov_b32 exec_hi, -1')
    a('L_nopad:')
def ustage(ch):
    r = vUL + 8 * ch; o = vUL + 24 + 4 * ch
    def f0():
        a.wvm(tk['u%d' % ch])
        a('v_and_b32 %s, v38, %s' % (v(r + 3), v(r + 3)))
        a.ds('ds_write_b128 v37, %s offset:%d' % (v(r + 4, 4), ch * UCH))
        a('v_add_u32 v39, %d, v37' % (ch * UCH + 2 * UC + 4))
    def f1():
        for k in range(4): a('v_alignbit_b32 %s, %s, %s, 16' % (v(o + k), v(r + 4 + k), v(r + 3 + k)))
    def f2():
        a.ds('ds_write2_b32 v39, %s, %s offset0:0 offset1:1' % (v(r + 4), v(r + 5)))
        a.ds('ds_write2_b32 v39, %s, %s offset0:2 offset1:3' % (v(r + 6), v(r + 7)))
        a('v_add_u32 v41, %d, v39' % UC)
    def f3():
        a.ds('ds_write_b128 v37, %s offset:%d' % (v(o, 4), ch * UCH + UC))
    def f4():
        a.ds('ds_write2_b32 v41, %s, %s offset0:0 offset1:1' % (v(o), v(o + 1)))
        a.ds('ds_write2_b32 v41, %s, %s offset0:2 offset1:3' % (v(o + 2), v(o + 3)))
    return [f0, f1, f2, f3, f4]
w2q = [w2_load(n) for n in range(60)]
side = dma_ops(3) + dma_ops(4)
side2 = []
gt = {}
for n in range(40):
    c, kk = divmod(n, 4); slot = c % 5; f = vF[n % 3]
    if kk == 2 and c + 1 < 10:
        b = c + 1
        while b not in tCH: side.pop(0)()
        a.wvm(tCH[b])
        a('s_barrier')
        stamp('B%d' % b, 'g1')
        if 2 <= b and b + 3 < 10: side += dma_ops(b + 3)
        if b == 2: side += [polls, polls2]
        if b == 4:
            while 'poll' not in tk: side.pop(0)()
            check_polls()
            side = [after_polls] + side
        if b == 5: side += [u_load(ch, j) for ch in range(3) for j in range(2)]
        if b == 7:
            side += [w2q.pop(0) for _ in range(args.w2tail)]
            side2 += [ustage_setup]
        if b == 8: side2 += [ustage_pad] + ustage(0) + ustage(1) + ustage(2)
    rd = g1_reads(n + 2) if n + 2 < 40 else []
    tok[n + 2] = {}
    grd = []
    if kk < 2:
        r, off = xbase(vGXA + kk, vGXB + kk, slot)
        grd = [('gx', 'ds_read_b128 %s, %s offset:%d' % (v(vGF + 8 * kk, 4), v(r), off)),
               ('g%d' % kk, 'ds_read_b128 %s, %s offset:%d' % (v(vGF + 8 * kk + 4, 4), v(vGWc), 64 * kk))]
    allrd = [(tok[n + 2], x) for x in rd] + [(gt, x) for x in grd]
    per = [[], [], []]
    for i, r in enumerate(allrd): per[min(2, i * 3 // max(len(allrd), 1))].append(r)
    for j in range(3):
        a.wlg(max(tok[n]['x'], tok[n]['w%d' % j]))
        cin = '0' if n == 0 else v(vACC + 16 * j, 16)
        a('v_mfma_f32_32x32x16_bf16 %s, %s, %s, %s' % (v(vACC + 16 * j, 16), v(f + 4 + 4 * j, 4), v(f, 4), cin))
        for d, (nm, ins) in per[j]: d[nm] = a.ds(ins)
        if side and (j != 1 or len(side) > 8): side.pop(0)()
        if side2 and j != 0: side2.pop(0)()
    if kk == 1:
        a('s_add_u32 s13, s13, 1')
        a('s_cmp_ge_u32 s13, 10')
        a('s_cselect_b32 s13, 0, s13')
        a('s_lshl_b32 s4, s13, 7')
        a('v_add_u32 %s, s4, %s' % (v(vGWc), v(vGW0)))
    if kk >= 2:
        g = kk - 2
        a.wlg(gt['g%d' % g])
        a('v_mfma_f32_16x16x32_bf16 %s, %s, %s, %s' % (v(vGACC, 4), v(vGF + 8 * g + 4, 4), v(vGF + 8 * g, 4), v(vGACC, 4)))
while side: side.pop(0)()
while side2: side2.pop(0)()
stamp('g1')

a('''
v_bfe_u32 v36, v1, 4, 1
v_mul_u32_u24 v36, %d, v36
v_lshrrev_b32 v37, 5, v1
v_lshl_add_u32 v36, v37, 8, v36
v_and_b32 v37, 15, v1
v_lshl_add_u32 v36, v37, 4, v36
s_lshl_b32 s4, s9, 3
s_lshl_b32 s5, s8, 1
s_add_u32 s4, s4, s5
s_mul_i32 s4, s4, 48
s_mul_i32 s5, s10, 3
s_add_u32 s4, s4, s5
s_lshl_b32 s79, s4, 10
s_add_u32 s79, s79, %d
s_mov_b32 s72, 0xbfb8aa3b
s_mov_b32 s73, 0xbfb8aa3b
''' % (48 * 1024, WS_HP))
nsil = args.w2silu
for g in range(6):
    j, p = g // 2, g % 2
    x = vACC + 16 * j + 8 * p
    e = 96 + 8 * (g & 1); o = 112 + 4 * (g & 3)
    for i in range(4): a('v_pk_mul_f32 %s, %s, s[72:73]' % (v(e + 2 * i, 2), v(x + 2 * i, 2)))
    for i in range(8): a('v_exp_f32 %s, %s' % (v(e + i), v(e + i)))
    for i in range(4): a('v_pk_add_f32 %s, %s, 1.0 op_sel_hi:[1,0]' % (v(e + 2 * i, 2), v(e + 2 * i, 2)))
    for i in range(8):
        a('v_rcp_f32 %s, %s' % (v(e + i), v(e + i)))
        if i == 3:
            for _ in range(nsil * (g + 1) // 6 - nsil * g // 6): w2q.pop(0)()
    for i in range(4): a('v_pk_mul_f32 %s, %s, %s' % (v(e + 2 * i, 2), v(e + 2 * i, 2), v(x + 2 * i, 2)))
    for i in range(4): a('v_cvt_pk_bf16_f32 %s, %s, %s' % (v(o + i), v(e + 2 * i), v(e + 2 * i + 1)))
    tH = a.vmem('buffer_store_dwordx4 %s, v36, %s, s79 offen offset:%d sc1' % (v(o, 4), RWS, 1024 * j + 512 * p))
a('''
v_bfe_u32 v40, v1, 2, 2
v_mul_u32_u24 v40, %d, v40
v_and_b32 v41, 3, v1
v_lshl_add_u32 v40, v41, 3, v40
v_lshrrev_b32 v41, 4, v1
v_lshlrev_b32 v42, 4, v41
v_sub_u32 v40, v40, v42
v_add_u32 v32, %d, v40
v_and_b32 v40, 15, v1
v_lshl_add_u32 v40, v40, 5, v42
v_add_u32 v33, %d, v40
''' % (UC, L_U + 56, L_KL + 32))
a.wlg0()
a('s_barrier')
stamp('silu')

FHL = 'buffer_load_dwordx2 %s, v34, %s, s86 offen sc1' % (v(vPOLL, 2), RWS)
def pub_h():
    a.wvm(tH)
    publish('''
    s_lshl_b32 s4, s9, 4
    s_add_u32 s4, s4, s10
    s_lshl_b32 s4, s4, 2
    s_add_u32 s4, s4, s8
    s_lshl_b32 s4, s4, %d
    s_add_u32 s4, s4, %d
    ''' % (FSH, WS_FH))
def poll_h():
    a('''
    v_bfe_u32 v34, v1, 1, 2
    v_and_b32 v35, 1, v1
    v_lshl_add_u32 v34, v34, 2, v35
    v_lshlrev_b32 v34, %d, v34
    s_lshl_b32 s86, s9, 6
    s_lshl_b32 s4, s8, 4
    s_add_u32 s86, s86, s4
    s_lshl_b32 s4, s12, 1
    s_add_u32 s86, s86, s4
    s_lshl_b32 s86, s86, %d
    s_add_u32 s86, s86, %d
    ''' % (FSH, FSH, WS_FH))
    tk['pollh'] = a.vmem(FHL)
def h_addrs():
    a('''
    s_lshl_b32 s4, s9, 3
    s_lshl_b32 s5, s12, 2
    s_add_u32 s4, s4, s5
    s_mul_i32 s4, s4, 48
    s_mul_i32 s5, s8, 12
    s_add_u32 s4, s4, s5
    s_lshl_b32 s4, s4, 10
    s_add_u32 s4, s4, %d
    ''' % WS_HP)
    for n in range(4):
        a('s_add_u32 s5, s76, %d' % (n + 1))
        a('s_and_b32 s5, s5, 3')
        a('s_mul_i32 s5, s5, %d' % (48 * 1024))
        a('s_add_u32 s%d, s4, s5' % (94 + n))
def hreg(n, k):
    if n == 0: return 176 + 4 * k
    if n == 1: return 48 + 4 * k
    if n == 2: return 96 + 4 * k
    return 144 + 4 * k if k < 8 else 224 + 4 * (k - 8)
tHL = {}
def h_load(n, k):
    def f():
        if k in (4, 8): a('s_add_u32 s%d, s%d, 4096' % (94 + n, 94 + n))
        tHL[(n, k)] = a.vmem('buffer_load_dwordx4 %s, v2, %s, s%d offen offset:%d sc1' % (v(hreg(n, k), 4), RWS, 94 + n, 1024 * (k % 4)))
    return f
def conv_pair(accA, accB, gA, sreg, tmp):
    a('v_cvt_pk_bf16_f32 %s, %s, %s' % (v(tmp), v(accA), v(accA + 1)))
    a('v_cvt_pk_bf16_f32 %s, %s, %s' % (v(tmp + 1), v(accA + 2), v(accA + 3)))
    a('v_cvt_pk_bf16_f32 %s, %s, %s' % (v(tmp + 2), v(accB), v(accB + 1)))
    a('v_cvt_pk_bf16_f32 %s, %s, %s' % (v(tmp + 3), v(accB + 2), v(accB + 3)))
    a('s_nop 1')
    a('v_permlane16_swap_b32 %s, %s' % (v(tmp), v(tmp + 2)))
    a('v_permlane16_swap_b32 %s, %s' % (v(tmp + 1), v(tmp + 3)))
    return a.vmem('buffer_store_dwordx4 %s, v36, %s, s%d offen offset:%d sc1' % (v(tmp, 4), RWS, sreg, 512 * gA))
def conv_single(accA, gA, sreg, tmp):
    a('v_cvt_pk_bf16_f32 %s, %s, %s' % (v(tmp), v(accA), v(accA + 1)))
    a('v_cvt_pk_bf16_f32 %s, %s, %s' % (v(tmp + 1), v(accA + 2), v(accA + 3)))
    return a.vmem('buffer_store_dwordx2 %s, v37, %s, s%d offen offset:%d sc1' % (v(tmp, 2), RWS, sreg, 512 * gA))
def split(code):
    return [(lambda l=l: a(l)) for l in code.split('\n') if l.strip()]
STORE_ADDRS = '''
v_and_b32 v38, 15, v1
v_lshlrev_b32 v38, 5, v38
v_lshrrev_b32 v39, 5, v1
v_lshl_add_u32 v36, v39, 4, v38
v_bfe_u32 v39, v1, 4, 1
v_lshl_add_u32 v36, v39, 9, v36
v_lshrrev_b32 v39, 4, v1
v_lshl_add_u32 v37, v39, 3, v38
s_lshl_b32 s88, s14, 12
s_add_u32 s88, s88, %d
s_lshl_b32 s89, s15, 12
s_add_u32 s89, s89, %d
s_lshl_b32 s90, s3, 12
s_add_u32 s90, s90, %d
s_lshl_b32 s80, s2, 12
s_add_u32 s80, s80, 0x%x
''' % (WS_AT, WS_AT, WS_AT, WS_JUNK)

def conv_body(stages, nbuf, bufsz, vBUF, sidework):
    def issue(i, r): return a.ds(r[1](vBUF + (i % nbuf) * bufsz + r[2]))
    toks = [dict() for _ in stages]
    ahead = nbuf - 1
    for i in range(ahead):
        for r in stages[i][0]: toks[i][r[0]] = issue(i, r)
    gi = 0
    for i, (rd, mf) in enumerate(stages):
        nxt = list(stages[i + ahead][0]) if i + ahead < len(stages) else []
        base = vBUF + (i % nbuf) * bufsz
        nm = len(mf); done = 0
        for k, (acc, kA, rA, kB, rB, first) in enumerate(mf):
            a.wlg(max(toks[i][kA], toks[i][kB]))
            a('v_mfma_f32_16x16x32_bf16 %s, %s, %s, %s' % (v(acc, 4), v(base + rA, 4), v(base + rB, 4), '0' if first else v(acc, 4)))
            want = min(len(nxt), -(-len(nxt) * (k + 1) // nm))
            while done < want:
                toks[i + ahead][nxt[done][0]] = issue(i + ahead, nxt[done]); done += 1
            for f in sidework.get(gi, []): f()
            gi += 1

NH0 = args.nh0
def make_side(tag):
    sw = {}
    pos = 1
    for f in w2q:
        sw.setdefault(pos, []).append(f); pos += args.w2step
    assert pos <= args.pollh + args.w2step, pos
    sw.setdefault(args.pubh, []).append(pub_h)
    for i, f in enumerate(split(STORE_ADDRS)): sw.setdefault(20 + 4 * i + 2, []).append(f)
    sw.setdefault(120, []).append(h_addrs)
    sw.setdefault(args.pollh, []).append(poll_h)
    def chk():
        a.wvm(tk['pollh'])
        c_ = 'v_cmp_ne_u64 vcc, s[6:7], %s' % v(vPOLL, 2)
        a(c_); spin('L_sh' + tag, FHL, c_)
    sw.setdefault(args.chkh, []).append(chk)
    for i in range(NH0): sw.setdefault(min(215, args.chkh + 3 * i), []).append(h_load(0, i))
    if 'cv' in args.fine.split(','):
        for p in (54, 108, 162): sw.setdefault(p, []).append(lambda p=p: stamp('cv%d' % p))
    return sw

def build_stage(Gs, accmap, lorder, goff, xoff, xrel, first_stage):
    rd = []; mf = []
    rem = [(i, g - i, g) for g in Gs for i in range(g + 1)]
    order = []; sG = []; sX = []
    for kind, idx in lorder:
        if kind == 'G':
            for h in range(2):
                rd.append(('G%d%s' % (idx, 'a' if h == 0 else ''), (lambda r, o=goff + 512 * idx + (8 if h == 0 else 0): 'ds_read_b64_tr_b16 %s, v32 offset:%d' % (v(r, 2), o)), 4 * idx + 2 * h))
            sG.append(idx)
        else:
            rd.append(('X%d' % idx, (lambda r, o=xoff + 512 * idx: 'ds_read_b128 %s, v33 offset:%d' % (v(r, 4), o)), xrel + 4 * idx))
            sX.append(idx)
        for pr in list(rem):
            if pr[0] in sG and pr[1] in sX: order.append(pr); rem.remove(pr)
    assert not rem
    seen = set()
    for (i, ip, g) in order:
        mf.append((accmap[g], 'G%d' % i, 4 * i, 'X%d' % ip, xrel + 4 * ip, first_stage and g not in seen)); seen.add(g)
    return rd, mf

st0 = a.save(); sn0 = list(stamp_names)
a('s_cmp_eq_u32 s8, 3')
a('s_cbranch_scc1 L_conv3')
a('s_mul_i32 s4, s8, %d' % UCH)
a('v_add_u32 v32, s4, v32')
a('s_mul_i32 s4, s8, %d' % KLSZ)
a('v_add_u32 v33, s4, v33')
Gs = [0, 4, 5, 6, 7]
LO = [('G', 0), ('X', 0), ('X', 4), ('G', 4), ('G', 1), ('X', 3), ('G', 2), ('X', 2), ('G', 3), ('X', 1), ('X', 5), ('G', 5), ('X', 6), ('G', 6), ('X', 7), ('G', 7)]
stages = [build_stage(Gs, {g: 4 + 4 * i for i, g in enumerate(Gs)}, LO, 64 * mp, 64 * (7 - mp), 32, mp == 0) for mp in range(8)]
conv_body(stages, 2, 64, 48, make_side('m'))
a('s_cmp_eq_u32 s77, 0')
a('s_cselect_b32 s90, s80, s90')
a('s_cmp_eq_u32 s8, 1')
a('s_cselect_b32 s88, s89, s88')
a('s_cmp_eq_u32 s8, 2')
a('s_cselect_b32 s88, s90, s88')
a('s_nop 2')
conv_single(4, 0, 88, 38)
conv_pair(8, 12, 4, 88, 40)
conv_pair(16, 20, 6, 88, 44)
st_main = a.save(); tk_main = dict(tk); tHL_main = dict(tHL); sn_main = list(stamp_names)
a('s_branch L_convdone')
a('L_conv3:')
a.restore(st0); stamp_names[:] = sn0
acc3 = [4, 8, 12, 16, 20, 144, 148, 152, 156]
LO3 = [('G', 0), ('X', 1), ('G', 1), ('X', 0), ('X', 2), ('G', 2), ('X', 3), ('G', 3)]
stages = [build_stage((1, 2, 3), {g: acc3[3 * ch + g - 1] for g in (1, 2, 3)}, LO3, ch * UCH + 64 * mp, ch * KLSZ + 64 * (7 - mp), 16, mp == 0)
          for mp in range(8) for ch in range(3)]
conv_body(stages, 3, 32, 48, make_side('w'))
a('s_cmp_eq_u32 s77, 0')
a('s_cselect_b32 s90, s80, s90')
a('s_nop 5')
for ch in range(3):
    conv_single(acc3[3 * ch], 1, 88 + ch, 40 + 2 * ch)
    conv_pair(acc3[3 * ch + 1], acc3[3 * ch + 2], 2, 88 + ch, 160 + 4 * ch)
a('L_convdone:')
a.restore(st_main); tk = tk_main; tHL.clear(); tHL.update(tHL_main); stamp_names[:] = sn_main
tA = a.vm
a.lg_done = a.lg
stamp('conv')

hq = [h_load(n, k) for n in range(4) for k in range(12)][NH0:]
for _ in range(6): hq.pop(0)()
accs = [[4, 8, 12, 16, 20], [40, 44, 240, 244, 248]]
for n in range(3):
    a('s_add_u32 s4, s8, %d' % (n + 1))
    a('s_and_b32 s4, s4, 3')
    a('s_mul_i32 s4, s4, %d' % (3 * 5120))
    if n: a('s_add_u32 s4, s4, %d' % (L_RED + n * 5120))
    a('v_add_u32 v%d, s4, v2' % (32 + n))
a('s_mul_i32 s4, s8, %d' % (3 * 5120))
a('v_add_u32 v35, s4, v2')
FAL0 = 'buffer_load_dwordx2 v[36:37], v28, %s, s86 offen sc1' % RWS
FAL1 = 'buffer_load_dwordx2 v[38:39], v28, %s, s86 offen offset:%d sc1' % (RWS, FSTR)
def pub_a():
    a.wvm(tA)
    publish('''
    s_lshl_b32 s4, s92, 2
    s_add_u32 s4, s4, s8
    s_lshl_b32 s4, s4, %d
    s_add_u32 s4, s4, %d
    ''' % (FSH, WS_FA))
def poll_a():
    a('s_lshl_b32 s86, s11, %d' % (7 + FSH))
    a('s_add_u32 s86, s86, %d' % WS_FA)
    a('v_lshlrev_b32 v28, %d, v1' % (FSH + 1))
    a.vmem(FAL0)
    tk['polla'] = a.vmem(FAL1)
a.wvm(tk['w2'])
redq = []
for n in range(4):
    acc = accs[n & 1]
    for k in range(12):
        a.wvm(tHL[(n, k)])
        for i in range(5):
            a('v_mfma_f32_16x16x32_bf16 %s, %s, %s, %s' % (v(acc[i], 4), ac(4 * (5 * k + i), 4), v(hreg(n, k), 4), '0' if k == 0 else v(acc[i], 4)))
            if i == 1 and hq: hq.pop(0)()
            if i == 3 and redq and k >= 2: redq.pop(0)()
        if n == 0 and k == 9: pub_a()
        if n == 3 and k == 2: poll_a()
    if n < 3:
        for i in range(5):
            def f(i=i, n=n, acc=acc): a.ds('ds_write_b128 v%d, %s offset:%d' % (32 + n, v(acc[i], 4), 1024 * i))
            redq.append(f)
    stamp('g2_%d' % n, 'g2' if n < 3 else None)
assert not redq and not hq
a('''
v_mul_f32 v24, s72, v24
v_exp_f32 v24, v24
s_nop 0
v_add_f32 v24, 1.0, v24
v_rcp_f32 v24, v24
''')
a.wlg0()
a('s_barrier')
vR = 60
rt = []
for n in range(3):
    for i in range(5):
        rt.append(a.ds('ds_read_b128 %s, v35 offset:%d' % (v(vR + 20 * n + 4 * i, 4), n * 5120 + 1024 * i)))
vA = 128
a('''
v_lshrrev_b32 v32, 4, v1
v_mul_u32_u24 v33, %d, v32
v_and_b32 v34, 15, v1
v_lshl_add_u32 v33, v34, 1, v33
s_lshl_b32 s4, s9, 7
s_lshl_b32 s5, s12, 6
s_add_u32 s4, s4, s5
s_lshl_b32 s5, s76, 4
s_add_u32 s79, s4, s5
s_mul_i32 s4, s11, %d
s_lshl_b32 s5, s79, 1
s_add_u32 s4, s4, s5
s_add_u32 s4, s4, %d
''' % (20 * AT_PITCH, 80 * AT_PITCH, WS_AT))
a.wvm(tk['polla'])
CA = 'v_cmp_ne_u64 vcc, s[6:7], v[36:37]\nv_cmp_ne_u64 s[34:35], s[6:7], v[38:39]\ns_or_b64 vcc, vcc, s[34:35]'
a(CA); spin('L_sa', FAL0 + '\n' + FAL1, CA)
stamp('aflag')
ta = []
for j in range(20):
    ta.append(a.vmem('buffer_load_short_d16_hi %s, v33, %s, s4 offen sc1' % (v(vA + j), RWS)))
    if j < 19: a('s_add_u32 s4, s4, %d' % AT_PITCH)
acc = accs[1]
for n in range(3):
    for i in range(5):
        a.wlg(rt[5 * n + i])
        for h in range(2):
            r = acc[i] + 2 * h
            a('v_pk_add_f32 %s, %s, %s' % (v(r, 2), v(r, 2), v(vR + 20 * n + 4 * i + 2 * h, 2)))
a('''
v_mul_u32_u24 v34, 1280, v34
v_mul_u32_u24 v32, 40, v32
v_add_u32 v34, v34, v32
s_mul_i32 s4, s79, 1280
s_mul_i32 s5, s11, 160
s_add_u32 s4, s4, s5
''')
vO = 152
for j in range(0, 20, 2):
    r = acc[j // 4] + (j % 4)
    a.wvm(ta[j + 1])
    a('v_pk_add_f32 %s, %s, %s neg_lo:[0,1] neg_hi:[0,1]' % (v(vA + j, 2), v(vA + j, 2), v(r, 2)))
    a('v_pk_fma_f32 %s, %s, v[24:25], %s op_sel_hi:[1,0,1]' % (v(vA + j, 2), v(vA + j, 2), v(r, 2)))
    a('v_cvt_pk_bf16_f32 %s, %s, %s' % (v(vO + j // 2), v(vA + j), v(vA + j + 1)))
    if j == 6: a.vmem('buffer_store_dwordx4 %s, v34, %s, s4 offen' % (v(vO, 4), s(rOUT, 4)))
    if j == 14: a.vmem('buffer_store_dwordx4 %s, v34, %s, s4 offen offset:16' % (v(vO + 4, 4), s(rOUT, 4)))
a.vmem('buffer_store_dwordx2 %s, v34, %s, s4 offen offset:32' % (v(vO + 8, 2), s(rOUT, 4)))
if args.stamps:
    stamp('fin')
    a.wvm0()
    stamp('drain')
    a('''
    s_lshl_b32 s4, s2, 2
    s_add_u32 s4, s4, s8
    s_lshl_b32 s4, s4, 8
    s_add_u32 s4, s4, %d
    v_lshlrev_b32 v32, 3, v1
    s_mov_b64 exec, 0xffffffff
    buffer_store_dwordx2 v[254:255], v32, %s, s4 offen
    ''' % (WS_ST, RWS))
if args.pad:
    a('''
    s_waitcnt vmcnt(0)
    L_padw:
    s_sleep 4
    s_memrealtime s[100:101]
    s_waitcnt lgkmcnt(0)
    s_sub_u32 s100, s100, s6
    s_cmp_lt_u32 s100, %d
    s_cbranch_scc1 L_padw
    ''' % (args.pad * 100))
if args.dbgt:
    a('''
    s_cmp_lg_u32 s8, 0
    s_cbranch_scc1 L_end
    v_subrev_u32 v254, s6, v254
    v_lshlrev_b32 v32, 2, v1
    v_add_u32 v32, 8, v32
    s_mov_b64 exec, 0x3fff
    global_atomic_smax v32, v254, s[44:45] sc1
    ''')
a('L_end:')
a('s_endpgm')
kernel_desc(a, KN, vgpr=512, sgpr=102, accum=256)
LL = ['; @launch grid=(256,1,1) block=(256,1,1) lds=%d' % LDS_SIZE]
wrap = lambda lines: file_text(LL, '\n'.join(lines) + '\n')
lines, size, npro, npad = align(a.lines, wrap)
assert size <= 32 * 9 * 128, size
open(args.o, 'w').write(wrap(lines))
print('code bytes', size, 'promoted', npro, 'padded', npad, 'stamps:', ' '.join(stamp_names))
```

```python
import sys, argparse
sys.path.insert(0, 'exp')
from asmlib import *
from align import align

ap = argparse.ArgumentParser()
ap.add_argument('-o', default='k.s')
ap.add_argument('--stamps', action='store_true')
ap.add_argument('--fine', default='')
ap.add_argument('--dbgK', action='store_true')
ap.add_argument('--pubh', type=int, default=95)
ap.add_argument('--pollh', type=int, default=165)
ap.add_argument('--chkh', type=int, default=192)
ap.add_argument('--w2tail', type=int, default=14)
ap.add_argument('--w2silu', type=int, default=6)
ap.add_argument('--w2step', type=int, default=4)
ap.add_argument('--nh0', type=int, default=8)
ap.add_argument('--pad', type=int, default=0)
ap.add_argument('--dbgt', action='store_true')
ap.add_argument('--outfl', default='')
args = ap.parse_args()

FSH = 5
FSTR = 1 << FSH
FWSH = 7
WS_FU = 0x00000
WS_FW = 0x20000
WS_FH = 0x40000
WS_FA = 0x60000
WS_UT = 0x100000; UT_PITCH = 4224
WS_AT = 0x500000; AT_PITCH = 4096
WS_W2P = 0x800000
WS_HP = 0x1000000
WS_ST = 0x2000000
WS_DBG = 0x2100000
WS_JUNK = 0x3000000
WS_SIZE = 0x4000000

TP = 272
TABSZ = 53 * TP
SLOT = 28672
L_RING = 4 * TABSZ
SL = [L_RING, L_RING + SLOT, L_RING + 2 * SLOT, 0, SLOT]
L_KL = L_RING + 3 * SLOT
KLSZ = 4608
L_GW = L_KL + 3 * KLSZ
L_DMX = L_GW + 2048
DP = 144
LDS_SIZE = 163840
assert L_DMX + 22 * DP <= LDS_SIZE
L_RED = 0
L_U = 61440
UC = 4160
UCH = 4 * UC


class G(Asm):
    def __init__(self):
        super().__init__()
        self.vm = 0; self.lg = 0; self.vm_done = 0; self.lg_done = 0
    def vmem(self, s_):
        self(s_); self.vm += 1; return self.vm
    def ds(self, s_):
        self(s_); self.lg += 1; return self.lg
    def wvm(self, tok):
        if tok <= self.vm_done: return
        n = min(self.vm - tok, 63)
        assert n >= 0
        self('s_waitcnt vmcnt(%d)' % n); self.vm_done = self.vm - n
    def wlg(self, tok):
        if tok <= self.lg_done: return
        n = min(self.lg - tok, 15)
        self('s_waitcnt lgkmcnt(%d)' % n); self.lg_done = self.lg - n
    def wlg0(self):
        self('s_waitcnt lgkmcnt(0)'); self.lg_done = self.lg
    def wvm0(self):
        self('s_waitcnt vmcnt(0)'); self.vm_done = self.vm
    def save(self): return (self.vm, self.lg, self.vm_done, self.lg_done)
    def restore(self, st): self.vm, self.lg, self.vm_done, self.lg_done = st

def v(i, n=1): return 'v%d' % i if n == 1 else 'v[%d:%d]' % (i, i + n - 1)
def ac(i, n=1): return 'a%d' % i if n == 1 else 'a[%d:%d]' % (i, i + n - 1)
def s(i, n=1): return 's%d' % i if n == 1 else 's[%d:%d]' % (i, i + n - 1)

a = G()
KN = NAME + '_kernel'
kernel_begin(a, KN)

pU, pAre, pAim, pBre, pBim, pCre, pCim, pLdt = 16, 18, 20, 22, 24, 26, 28, 30
pDsk, pX, pW1, pW2, pGW, pOut, pDbg, pWs = 32, 34, 36, 38, 40, 42, 44, 46
rU, rW1, rW2, rWS, rOUT, rGW = 48, 52, 56, 60, 64, 68
RWS = s(rWS, 4)
stamp_names = []
def stamp(name, fine=None):
    if not args.stamps: return
    if fine and fine not in args.fine.split(','): return
    i = len(stamp_names); stamp_names.append(name)
    assert i < 32
    a('s_memrealtime s[100:101]')
    a('s_memtime s[0:1]')
    a('s_waitcnt lgkmcnt(0)'); a.lg_done = a.lg
    a('v_writelane_b32 v254, s100, %d' % i)
    a('v_writelane_b32 v255, s0, %d' % i)

vDX, vDW, vGW0, vXA, vXB, vWB, vGWc, vGACC, vPOLL = 4, 8, 11, 12, 16, 20, 23, 24, 28
vGXA, vGXB = 44, 46

a('s_cmp_ge_u32 s2, 256')
a('s_cbranch_scc1 L_end')
a('s_load_dwordx16 s[16:31], s[0:1], 0')
a('s_load_dwordx16 s[32:47], s[0:1], 64')
a('s_memrealtime s[6:7]')
a('s_getpc_b64 s[4:5]')
a('L_pc:')
a('''
s_lshr_b32 s86, s2, 3
s_mul_i32 s87, s86, 9
v_min_u32 v32, 8, v0
v_add_u32 v32, s87, v32
v_lshlrev_b32 v32, 7, v32
v_min_u32 v32, L_end-L_pc, v32
''')
a.vmem('global_load_dword v33, v32, s[4:5]')
if args.stamps:
    a('v_mov_b32 v254, 0\nv_mov_b32 v255, 0')
a('''
v_and_b32 v1, 63, v0
v_lshrrev_b32 v34, 6, v0
v_lshlrev_b32 v2, 4, v1
v_readfirstlane_b32 s8, v34
s_and_b32 s4, s2, 7            ; xcd
s_lshr_b32 s92, s2, 4
s_lshl_b32 s92, s92, 3
s_add_u32 s92, s92, s4         ; cw
s_and_b32 s93, s86, 1          ; small ?
s_xor_b32 s77, s93, 1          ; big
s_mul_i32 s14, s92, 5
s_mul_i32 s94, s93, 3
s_add_u32 s14, s14, s94        ; c0
s_add_u32 s15, s14, 1          ; c1
s_add_u32 s3, s15, s77
s_cmp_eq_u32 s8, 0
s_cselect_b32 s94, s14, s3
s_cmp_eq_u32 s8, 1
s_cselect_b32 s94, s15, s94
s_cmp_eq_u32 s8, 3
s_cselect_b32 s95, s15, s94
s_cselect_b32 s96, 256, 0
s_cselect_b32 s97, 128, 0
v_cmp_gt_u32 vcc, 32, v1
v_mov_b32 v35, s94
v_mov_b32 v36, s95
v_cndmask_b32 v64, v35, v36, vcc
v_mov_b32 v35, s97
v_mov_b32 v36, s96
v_cndmask_b32 v63, v35, v36, vcc
v_mul_u32_u24 v35, 384, v64
v_add_u32 v63, v63, v35
v_lshl_add_u32 v63, v1, 2, v63
v_lshlrev_b32 v64, 1, v64
v_mov_b32 v3, 0
s_lshr_b32 s9, s4, 1
s_lshl_b32 s9, s9, 2
s_lshr_b32 s98, s86, 3         ; rl
s_add_u32 s9, s9, s98          ; rb
s_and_b32 s87, s4, 1
s_and_b32 s88, s86, 7          ; cl
s_lshl_b32 s10, s87, 3
s_add_u32 s10, s10, s88        ; cb
s_mul_i32 s13, s88, 5
s_lshr_b32 s13, s13, 2
s_mul_i32 s90, s98, 10
s_lshr_b32 s90, s90, 2
s_add_u32 s13, s13, s90
s_add_u32 s13, s13, s87
s_cmp_ge_u32 s13, 10
s_cselect_b32 s90, 10, 0
s_sub_u32 s13, s13, s90
s_mov_b32 s84, s13
s_mov_b32 s81, s13
s_mul_i32 s78, s8, 7168
''')
a('''
v_lshrrev_b32 v36, 3, v1
s_lshl_b32 s4, s9, 7
s_lshl_b32 s5, s8, 5
s_add_u32 s4, s4, s5
v_add_u32 v36, s4, v36
v_mul_u32_u24 v36, 1280, v36
v_and_b32 v37, 7, v1
v_lshrrev_b32 v38, 4, v1
v_xor_b32 v37, v37, v38
v_lshlrev_b32 v37, 4, v37
v_add_u32 v4, v36, v37
v_xor_b32 v37, 64, v37
v_add_u32 v5, v36, v37
v_add_u32 v5, %d, v5
v_add_u32 v6, %d, v4
v_add_u32 v7, %d, v5
''' % (10240 - 1024, 2 * (10240 - 1024), 2 * (10240 - 1024)))
a('s_waitcnt lgkmcnt(0)')
stamp('karg')
vRAW, vDT, vP2, vDSK = 48, 54, 56, 62
for j, ptr in enumerate((pAre, pAim, pBre, pBim, pCre, pCim)):
    a.vmem('global_load_dword %s, v63, %s' % (v(vRAW + j), s(ptr, 2)))
tPAR = a.vmem('global_load_short_d16_hi %s, v64, %s' % (v(vDT), s(pLdt, 2)))
srd(a, rU, pU, 2621440)
srd(a, rW1, pW1, 640 * 1536 * 2)

def dma_setup():
    a('s_lshl_b32 s79, s81, 7')
    a('s_mul_i32 s80, s81, %d' % (64 * 3072))
    a('s_add_u32 s81, s81, 1')
    a('s_cmp_ge_u32 s81, 10')
    a('s_cselect_b32 s81, 0, s81')
tCH = {}; tCHX = {}
def dma_ops(c, restore_m0=False):
    ops = []
    for j in range(7):
        def f(j=j):
            if j == 0: dma_setup()
            if restore_m0 or j in (0, 4):
                off = SL[c % 5] + (4096 if j >= 4 else 0)
                a('s_add_u32 m0, s78, %d' % off if off else 's_mov_b32 m0, s78')
                a('s_nop 0')
            if j < 4:
                t = a.vmem('buffer_load_dwordx4 %s, %s, s79 offen offset:%d lds' % (v(vDX + j), s(rU, 4), 1024 * j))
                tCHX[c] = t
            else:
                t = a.vmem('buffer_load_dwordx4 %s, %s, s80 offen offset:%d lds' % (v(vDW + j - 4), s(rW1, 4), 1024 * (j - 4)))
                if j == 6: tCH[c] = t
            if restore_m0: a('s_mov_b32 m0, s83')
        ops.append(f)
    return ops
c0ops = dma_ops(0)
for f in c0ops[:4]: f()
a('s_mov_b32 s82, s80')
a('''
s_mul_i32 s4, s8, %d
s_mul_i32 s5, s10, 192
s_add_u32 s4, s4, s5
''' % (16 * 3072))
for j in range(3):
    a('''
    v_add_u32 v36, %d, v1
    v_mul_u32_u24 v37, 5462, v36
    v_lshrrev_b32 v37, 16, v37
    v_mul_u32_u24 v38, 12, v37
    v_sub_u32 v38, v36, v38
    v_mul_u32_u24 v37, 3072, v37
    v_lshl_add_u32 v37, v38, 4, v37
    v_add_u32 v37, s4, v37
    v_subrev_u32 %s, %d, v37
    ''' % (64 * j, v(vDW + j), 1024 * j))
srd(a, rW2, pW2, 640 * 1536 * 2)
srd(a, rWS, pWs, WS_SIZE)
srd(a, rOUT, pOut, 2621440)
srd(a, rGW, pGW, 1280)
a('''
s_or_b32 s6, s6, 1
s_or_b32 s4, s2, s8
s_cmp_lg_u32 s4, 0
s_cbranch_scc1 L_nononce
v_mov_b32 v36, s6
v_mov_b32 v37, s7
global_store_dwordx2 v3, v[36:37], s[44:45] sc1
L_nononce:
''')
a('''
s_lshr_b32 s12, s88, 2         ; half
s_and_b32 s89, s88, 3
s_lshl_b32 s11, s87, 2
s_add_u32 s11, s11, s89        ; cb8
s_add_u32 s76, s8, s89
s_and_b32 s76, s76, 3          ; own tile
s_cmp_eq_u32 s89, 3
s_cselect_b32 s91, 1, 0
s_cmp_eq_u32 s87, 0
s_cselect_b32 s91, 1, s91      ; transposer predicate
s_lshl_b32 s92, s92, 1
s_add_u32 s92, s92, s93        ; o
s_lshl_b32 s99, s98, 1
s_add_u32 s99, s99, s12        ; sharer index of the W2' slice
s_lshl_b32 s85, s8, 8
s_sub_u32 s85, s85, 256
s_add_u32 s85, s85, s2         ; W2 job id
s_mul_i32 s83, s8, %d
s_mov_b32 s72, 0x3fb8aa3b
s_mov_b32 s73, 0x3e22f983
s_mov_b32 s74, 0x4138aa3b
s_mov_b32 s75, 0x3fa2f983
s_mov_b32 s93, 0xffff0000
''' % TABSZ)

vKA, vKB, vDMP, vE = 68, 69, 70, 72
a('''
v_and_b32 v36, 31, v1
v_lshrrev_b32 v37, 5, v1
v_mul_u32_u24 v38, %d, v36
v_lshl_add_u32 v38, v37, 4, v38
v_add_u32 v68, s83, v38
v_min_u32 v38, 20, v36
v_add_u32 v38, 32, v38
v_mul_u32_u24 v38, %d, v38
v_lshl_add_u32 v38, v37, 4, v38
v_add_u32 v69, s83, v38
v_min_u32 v38, 21, v36
v_mul_u32_u24 v38, %d, v38
v_lshl_add_u32 v70, v37, 4, v38
''' % (TP, TP, DP))
a('''
v_lshrrev_b32 v38, 1, v1
v_and_b32 v38, 7, v38
v_xor_b32 v38, v38, v37
v_lshlrev_b32 v38, 4, v38
v_lshl_add_u32 v38, v36, 7, v38
v_add_u32 v12, s78, v38
v_xor_b32 v13, 32, v12
v_xor_b32 v14, 64, v12
v_xor_b32 v15, 96, v12
''')
for k in range(4): a('v_add_u32 %s, %d, %s' % (v(vXB + k), SL[1], v(vXA + k)))
a('''
v_bfe_u32 v38, v1, 2, 2
v_lshl_add_u32 v38, v37, 3, v38
v_mul_u32_u24 v38, 192, v38
v_bfe_u32 v39, v1, 4, 1
v_lshl_add_u32 v38, v39, 5, v38
v_and_b32 v39, 3, v1
v_lshl_add_u32 v38, v39, 3, v38
v_add_u32 v20, %d, v38
v_add_u32 v21, %d, v38
v_add_u32 v22, %d, v38
''' % (4096, 4096 + SL[0], 4096 + SL[2]))
a('''
s_lshl_b32 s4, s12, 1
s_lshr_b32 s5, s76, 1
s_add_u32 s4, s4, s5
s_mul_i32 s4, s4, 7168
s_and_b32 s5, s76, 1
s_lshl_b32 s5, s5, 11
s_add_u32 s4, s4, s5
v_and_b32 v38, 15, v1
v_lshrrev_b32 v39, 4, v1
v_lshrrev_b32 v40, 1, v38
v_xor_b32 v40, v40, v39
v_lshlrev_b32 v40, 4, v40
v_lshl_add_u32 v40, v38, 7, v40
v_add_u32 v44, s4, v40
v_xor_b32 v45, 64, v44
v_add_u32 v46, %d, v44
v_add_u32 v47, %d, v45
v_lshlrev_b32 v11, 4, v39
v_add_u32 v11, %d, v11
v_mov_b32 v24, 0
v_mov_b32 v25, 0
v_mov_b32 v26, 0
v_mov_b32 v27, 0
''' % (SL[1], SL[1], L_GW))
a('''
v_and_b32 v38, 1, v1
v_lshrrev_b32 v39, 1, v1
v_lshlrev_b32 v39, 2, v39
v_mul_u32_u24 v40, %d, v38
v_add_u32 v72, v40, v39
v_mul_u32_u24 v40, %d, v38
v_add_u32 v73, v40, v39
v_add_u32 v73, %d, v73
v_add_u32 v41, 1, v1
v_and_b32 v38, 1, v41
v_lshrrev_b32 v39, 1, v41
v_lshlrev_b32 v39, 2, v39
v_mul_u32_u24 v40, %d, v38
v_add_u32 v74, v40, v39
v_add_u32 v74, %d, v74
v_cmp_eq_u32 vcc, 63, v1
v_mov_b32 v42, %d
s_nop 0
v_cndmask_b32 v74, v74, v42, vcc
v_lshrrev_b32 v38, 5, v1
v_and_b32 v39, 31, v1
v_mul_u32_u24 v38, %d, v38
v_lshl_add_u32 v75, v39, 2, v38
v_add_u32 v75, %d, v75
v_lshrrev_b32 v38, 5, v41
v_and_b32 v39, 31, v41
v_mul_u32_u24 v38, %d, v38
v_lshl_add_u32 v76, v39, 2, v38
v_add_u32 v76, %d, v76
v_lshrrev_b32 v38, 4, v1
v_and_b32 v39, 15, v1
v_mul_u32_u24 v38, %d, v38
v_lshl_add_u32 v77, v39, 3, v38
v_add_u32 v77, %d, v77
v_lshrrev_b32 v38, 4, v41
v_and_b32 v39, 15, v41
v_mul_u32_u24 v38, %d, v38
v_lshl_add_u32 v78, v39, 3, v38
v_add_u32 v78, %d, v78
''' % (4 * DP, 2 * DP, 8 * DP, 2 * DP, 8 * DP, 12 * DP, 2 * DP, 12 * DP, 2 * DP, 12 * DP, DP, 16 * DP, DP, 16 * DP))

a.vmem('global_load_short_d16_hi %s, v64, %s' % (v(vDSK), s(pDsk, 2)))
nafter = a.vm - tPAR
a('''
v_min_u32 v36, 59, v1
v_mul_u32_u24 v37, 5462, v36
v_lshrrev_b32 v37, 16, v37
v_mul_u32_u24 v38, 12, v37
v_sub_u32 v38, v36, v38
v_mul_u32_u24 v37, 3072, v37
v_lshl_add_u32 v65, v38, 7, v37
s_lshl_b32 s95, s86, 2
s_add_u32 s95, s95, s8
s_mul_i32 s95, s95, %d
s_mul_i32 s96, s87, 1536
s_add_u32 s95, s95, s96
''' % (5 * 3072))
W1PF = 'buffer_load_dword v67, v65, %s, s95 offen' % s(rW1, 4)
a('''
s_cmp_eq_u32 s8, 0
s_cbranch_scc1 L_r0
s_cmp_eq_u32 s8, 3
s_cbranch_scc1 L_r3
s_cmp_ge_u32 s85, 384
s_cbranch_scc1 L_rnone
s_lshr_b32 s4, s85, 3
s_mul_i32 s4, s4, %d
s_and_b32 s5, s85, 7
s_mul_i32 s5, s5, 160
s_add_u32 s4, s4, s5
s_mul_i32 s5, s8, 5120
s_add_u32 m0, s5, %d
''' % (32 * 1280, L_KL - 5120))
for j in range(5):
    a('''
    v_add_u32 v36, %d, v1
    v_mul_u32_u24 v37, 6554, v36
    v_lshrrev_b32 v37, 16, v37
    v_mul_u32_u24 v38, 10, v37
    v_sub_u32 v38, v36, v38
    v_mul_u32_u24 v37, 1280, v37
    v_lshl_add_u32 v37, v38, 4, v37
    buffer_load_dwordx4 v37, %s, s4 offen lds
    s_add_u32 m0, m0, 1024
    ''' % (64 * j, s(rW2, 4)))
a(W1PF)
a('s_waitcnt vmcnt(%d)' % (nafter + 6))
a('s_branch L_rdone')
a('L_r0:')
a('s_mul_i32 s4, s14, 384')
a('s_add_u32 s4, s4, 256')
a('v_lshlrev_b32 v36, 1, v1')
a('v_add_u32 v36, s4, v36')
for j, ptr in enumerate((pAre, pAim, pBre, pBim, pCre, pCim)):
    a('global_load_short_d16_hi %s, v36, %s' % (v(vP2 + j), s(ptr, 2)))
a(W1PF)
a('s_waitcnt vmcnt(%d)' % (nafter + 7))
a('s_branch L_rdone')
a('L_r3:')
a('s_mov_b32 m0, %d' % L_GW)
a('s_nop 0')
a('buffer_load_dwordx4 v2, %s, 0 offen lds' % s(rGW, 4))
a('buffer_load_dwordx4 v2, %s, 0 offen offset:1024 lds' % s(rGW, 4))
a('''
s_mul_i32 s4, s98, 10
s_lshr_b32 s4, s4, 2
s_add_u32 s4, s4, s87
s_add_u32 s4, s4, 4
s_cmp_ge_u32 s4, 10
s_cselect_b32 s5, 10, 0
s_sub_u32 s4, s4, s5
s_cmp_ge_u32 s4, 5
s_cselect_b32 s5, 5, 0
s_sub_u32 s4, s4, s5           ; missing chunk mod 5
s_lshl_b32 s4, s4, 7
s_lshl_b32 s5, s9, 3
s_add_u32 s5, s5, s88
s_mul_i32 s5, s5, %d
s_add_u32 s4, s4, s5
v_and_b32 v36, 31, v1
v_mul_u32_u24 v36, 640, v36
buffer_load_dword v66, v36, %s, s4 offen
''' % (16 * 1280, s(rU, 4)))
a(W1PF)
a('s_waitcnt vmcnt(%d)' % (nafter + 4))
a('s_branch L_rdone')
a('L_rnone:')
a(W1PF)
a('s_waitcnt vmcnt(%d)' % (nafter + 1))
a('L_rdone:')
a.vm_done = tPAR
a.vm += 1; tROLE = a.vm
a.vm += 1
stamp('par')

vA1, vA2 = 80, 96
vSET = [112, 118]
vW = 124
def cmul(d, x, y, t):
    return ('v_pk_mul_f32 %s, %s, %s op_sel:[0,0] op_sel_hi:[1,0]' % (v(t, 2), v(x, 2), v(y, 2)),
            'v_pk_fma_f32 %s, %s, %s, %s op_sel:[1,1,0] op_sel_hi:[0,1,1] neg_lo:[1,0,0]' % (v(d, 2), v(x, 2), v(y, 2), v(t, 2)))

def kgen_setup(k, tmp):
    Q1, Z, S0 = vSET[k & 1], vSET[k & 1] + 2, vSET[k & 1] + 4
    if k < 2:
        P = tmp
        if k == 0:
            a('v_mul_f32 %s, s72, %s' % (v(vDT), v(vDT)))
            a('v_exp_f32 %s, %s' % (v(vDT), v(vDT)))
        for j in range(6):
            a(('v_lshlrev_b32 %s, 16, %s' if k == 0 else 'v_and_b32 %s, s93, %s') % (v(P + j), v(vRAW + j)))
            if k == 0 and j == 1: a('v_cvt_pk_bf16_f32 %s, %s, %s' % (v(vDT), v(vDT), v(vDT)))
            if k == 0 and j == 3: a('v_and_b32 %s, s93, %s' % (v(vDT), v(vDT)))
    else:
        P = vP2
    l1, l8, cs1, cs8, m, bc, t0 = [tmp + 6 + 2 * i for i in range(7)]
    m0_, m1_ = cmul(bc, P + 2, P + 4, t0)
    a('v_pk_mul_f32 %s, %s, %s op_sel_hi:[1,0]' % (v(l8, 2), v(P, 2), v(vDT, 2)))
    a(m0_)
    a('v_pk_mul_f32 %s, %s, s[72:73]' % (v(l1, 2), v(l8, 2)))
    a('v_pk_mul_f32 %s, %s, s[74:75]' % (v(l8, 2), v(l8, 2)))
    a(m1_)
    a('v_fract_f32 %s, %s' % (v(l1 + 1), v(l1 + 1)))
    a('v_fract_f32 %s, %s' % (v(l8 + 1), v(l8 + 1)))
    a('v_exp_f32 %s, %s' % (v(m + 1), v(l8)))
    a('v_exp_f32 %s, %s' % (v(m), v(l1)))
    a('v_cos_f32 %s, %s' % (v(cs8), v(l8 + 1)))
    a('v_sin_f32 %s, %s' % (v(cs8 + 1), v(l8 + 1)))
    a('v_cos_f32 %s, %s' % (v(cs1), v(l1 + 1)))
    a('v_sin_f32 %s, %s' % (v(cs1 + 1), v(l1 + 1)))
    a('v_pk_mul_f32 %s, %s, %s op_sel:[0,1] op_sel_hi:[1,1]' % (v(Q1, 2), v(cs8, 2), v(m, 2)))
    a('v_pk_mul_f32 %s, %s, %s op_sel_hi:[1,0]' % (v(S0, 2), v(bc, 2), v(vDT, 2)))
    a('v_pk_mul_f32 %s, %s, %s op_sel_hi:[1,0]' % (v(Z, 2), v(cs1, 2), v(m, 2)))

GROUPS = [[('Q2','Q1','Q1'),('S1','S0','Z')], [('Q4','Q2','Q2'),('Q3','Q2','Q1'),('S2','S1','Z')],
          [('Q8','Q4','Q4'),('Q5','Q4','Q1'),('S3','S2','Z'),('Q6','Q4','Q2')],
          [('Q16','Q8','Q8'),('Q7','Q4','Q3'),('S4','S3','Z'),('Q9','Q8','Q1')],
          [('Q32','Q16','Q16'),('Q10','Q8','Q2'),('S5','S4','Z'),('Q11','Q8','Q3')],
          [('S8','S0','Q32'),('Q12','Q8','Q4'),('S6','S5','Z'),('Q13','Q8','Q5')],
          [('S12','S8','Q32'),('S10','S4','Q32'),('S7','S6','Z'),('Q14','Q8','Q6')],
          [('S14','S12','Q32'),('S13','S10','Q32'),('S9','S2','Q32'),('Q15','Q8','Q7')],
          [('S16','S14','Q32'),('S15','S13','Q32'),('S11','S6','Q32'),('Q17','Q16','Q1')],
          [('S17','S16','Q32'),('Q18','Q16','Q2'),('Q19','Q16','Q3'),('Q20','Q16','Q4')],
          [('S18','S17','Q32'),('Q21','Q16','Q5'),('Q22','Q16','Q6'),('Q23','Q16','Q7')],
          [('S19','S18','Q32'),('Q24','Q16','Q8'),('Q25','Q16','Q9'),('Q26','Q16','Q10')],
          [('S20','S19','Q32'),('Q27','Q16','Q11'),('Q28','Q16','Q12'),('Q29','Q16','Q13')],
          [('Q30','Q16','Q14'),('Q31','Q16','Q15')]]
def kgen_body(k, side):
    R = {'Q1': vSET[k & 1], 'Z': vSET[k & 1] + 2, 'S0': vSET[k & 1] + 4}
    tmps = [vW + 2 * i for i in range(4)]
    cv = [vW + 8 + i for i in range(10)]
    nxt = vW + 18
    pend = ['S0', 'Q1']
    def flush():
        for i, nm in enumerate(pend):
            a('v_cvt_pk_bf16_f32 %s, %s, %s%s' % (v(cv[i]), v(R[nm]), '' if nm[0] == 'Q' else '-', v(R[nm] + 1)))
        for i, nm in enumerate(pend):
            row = int(nm[1:]) + (0 if nm[0] == 'Q' else 32)
            a.ds('ds_write_addtid_b32 %s offset:%d' % (v(cv[i]), row * TP))
        pend.clear()
        if side: side.pop(0)()
    for gi, grp in enumerate(GROUPS):
        ins = []
        for i, (nm, x, y) in enumerate(grp):
            R[nm] = nxt; nxt += 2
            ins.append(cmul(R[nm], R[x], R[y], tmps[i]))
        for m_, f_ in ins: a(m_)
        for m_, f_ in ins: a(f_)
        pend += [nm for nm, _, _ in grp if nm != 'Q32']
        if gi % 2 == 1: flush()
    assert not pend and nxt <= 250
    while side: side.pop(0)()
vFR = 160
def kgen_reads():
    toks = []
    a.wlg0()
    for kk in range(8):
        a.ds('ds_read_b128 %s, %s offset:%d' % (v(vFR + 8 * kk, 4), v(vKA), 32 * kk))
        toks.append(a.ds('ds_read_b128 %s, %s offset:%d' % (v(vFR + 8 * kk + 4, 4), v(vKB), 32 * kk)))
    return toks
def kgen_mfma(toks, first):
    for kk in range(8):
        a.wlg(toks[kk])
        acc = vA1 if kk < 4 else vA2
        c = '0' if (first and kk in (0, 4)) else v(acc, 16)
        a('v_mfma_f32_32x32x16_bf16 %s, %s, %s, %s' % (v(acc, 16), v(vFR + 8 * kk, 4), v(vFR + 8 * kk + 4, 4), c))

def spin(label, load, cmp_):
    a('s_cbranch_vccz %s_ok' % label)
    a('s_mov_b32 s82, 0x40000')
    a('%s_lp:' % label)
    a('s_sleep 1')
    a(load)
    a('s_waitcnt vmcnt(0)')
    a(cmp_)
    a('s_sub_u32 s82, s82, 1')
    a('s_cmp_eq_u32 s82, 0')
    a('s_cbranch_scc1 %s_ok' % label)
    a('s_cbranch_vccnz %s_lp' % label)
    a('%s_ok:' % label)

a('s_mov_b32 m0, s83')
a('v_mov_b32 v36, 0x3f80')
a.ds('ds_write_addtid_b32 v36 offset:0')
kgen_setup(0, vW)
kgen_body(0, [])
NL = 'global_load_dwordx2 %s, v3, s[44:45] sc1' % v(vPOLL, 2)
tNON = a.vmem(NL)
tk0 = kgen_reads()
kgen_setup(1, vW)
kgen_mfma(tk0, True)
stamp('r0')

a.wvm(tROLE)
st = a.save()
a('s_cmp_eq_u32 s91, 0')
a('s_cbranch_scc1 L_notr')
a('''
v_bfe_u32 v36, v1, 2, 2
v_and_b32 v37, 3, v1
v_lshl_add_u32 v38, v37, 3, v36
v_lshrrev_b32 v39, 5, v1
v_bfe_u32 v40, v1, 4, 1
v_lshrrev_b32 v41, 1, v38
v_and_b32 v41, 7, v41
v_xor_b32 v41, v41, v39
v_lshlrev_b32 v41, 4, v41
v_lshl_add_u32 v41, v38, 7, v41
v_lshl_add_u32 v41, v40, 3, v41
v_add_u32 v41, s78, v41
v_xor_b32 v42, 32, v41
v_xor_b32 v43, 64, v41
v_xor_b32 v40, 96, v41
''')
xr = {0: 41, 32: 42, 64: 43, 96: 40}
toks = []
for n in range(4):
    for h in range(2):
        toks.append(a.ds('ds_read_b64_tr_b16 %s, v%d offset:%d' % (v(224 + 4 * n + 2 * h, 2), xr[(32 * n) ^ (32 * h)], SL[0] + 512 * h)))
a('''
v_lshrrev_b32 v38, 4, v1
v_lshl_add_u32 v38, v38, 2, v37
v_mul_u32_u24 v38, %d, v38
v_lshl_add_u32 v36, v36, 4, v38
s_mul_i32 s4, s84, %d
s_lshl_b32 s5, s9, 8
s_add_u32 s4, s4, s5
s_lshl_b32 s5, s8, 6
s_add_u32 s4, s4, s5
s_add_u32 s4, s4, %d
''' % (UT_PITCH, 64 * UT_PITCH, WS_UT + 128))
for n in range(4):
    a.wlg(toks[2 * n + 1])
    a('buffer_store_dwordx4 %s, v36, %s, s4 offen sc1' % (v(224 + 4 * n, 4), RWS))
    a('s_add_u32 s4, s4, %d' % (16 * UT_PITCH))
a('L_notr:')
a.restore(st)
a.vm += 1; tCHORE = a.vm
stamp('chore')
def w0op(j):
    def f():
        a('s_add_u32 m0, s78, %d' % (SL[0] + 4096))
        a('s_nop 0')
        t = a.vmem('buffer_load_dwordx4 %s, %s, s82 offen offset:%d lds' % (v(vDW + j), s(rW1, 4), 1024 * j))
        if j == 2: tCH[0] = t
        a('s_mov_b32 m0, s83')
    return f
nop = lambda: None
kgen_body(1, [nop, nop, nop, nop, w0op(0), w0op(1), w0op(2)])
tk1 = kgen_reads()
a.wvm(tCHORE)
CMP0 = 'v_cmp_eq_u64 vcc, 0, %s' % v(vPOLL, 2)
a(CMP0)
spin('L_sn', NL, CMP0)
a('v_readfirstlane_b32 s6, %s' % v(vPOLL))
a('v_readfirstlane_b32 s7, %s' % v(vPOLL + 1))
def publish(soff_code, skip=None):
    a(soff_code)
    a('s_mov_b64 exec, 1')
    ins = 'buffer_store_dwordx2 v[30:31], v3, %s, s4 offen sc1' % RWS
    if skip: a(ins)
    else: a.vmem(ins)
    a('s_mov_b64 exec, -1')
    if skip: a(skip + ':')
a('v_mov_b32 v30, %s' % v(vPOLL))
a('v_mov_b32 v31, %s' % v(vPOLL + 1))
publish('''
s_cmp_eq_u32 s91, 0
s_cbranch_scc1 L_skfu
s_lshl_b32 s4, s84, 6
s_lshl_b32 s5, s9, 2
s_add_u32 s4, s4, s5
s_add_u32 s4, s4, s8
s_lshl_b32 s4, s4, %d
''' % FSH, 'L_skfu')
kgen_mfma(tk1, False)
stamp('r1')
a('s_cmp_lg_u32 s8, 0')
a('s_cbranch_scc1 L_nor2')
kgen_setup(2, vW)
kgen_body(2, [])
kgen_mfma(kgen_reads(), False)
dma_setup(); dma_setup()
a('s_branch L_r2done')
a('L_nor2:')
st = a.save()
a('''
s_cmp_ge_u32 s85, 384
s_cbranch_scc1 L_now2
v_lshrrev_b32 v36, 5, v1
v_bfe_u32 v37, v1, 4, 1
v_bfe_u32 v38, v1, 2, 2
v_lshl_add_u32 v38, v37, 2, v38
v_lshl_add_u32 v38, v36, 4, v38
v_mul_u32_u24 v38, 160, v38
v_and_b32 v39, 3, v1
v_mul_u32_u24 v39, 40, v39
v_add_u32 v38, v38, v39
s_mul_i32 s4, s8, 5120
s_add_u32 s4, s4, %d
v_add_u32 v38, s4, v38
''' % (L_KL - 5120))
toks = []
for i in range(5):
    for h in range(2):
        toks.append(a.ds('ds_read_b64_tr_b16 %s, v38 offset:%d' % (v(140 + 4 * i + 2 * h, 2), 8 * i + 1280 * h)))
a('''
s_and_b32 s4, s85, 7
s_mul_i32 s4, s4, 48
s_lshr_b32 s5, s85, 3
s_add_u32 s4, s4, s5
s_mul_i32 s4, s4, 5120
s_add_u32 s4, s4, %d
s_add_u32 s5, s4, 4096
''' % WS_W2P)
for i in range(5):
    a.wlg(toks[2 * i + 1])
    if i < 4: a('buffer_store_dwordx4 %s, v2, %s, s4 offen offset:%d sc1' % (v(140 + 4 * i, 4), RWS, 1024 * i))
    else: a('buffer_store_dwordx4 %s, v2, %s, s5 offen sc1' % (v(140 + 4 * i, 4), RWS))
a('s_nop 0')
a('L_now2:')
a.restore(st)

a.vm += 1; tW2C = a.vm
a('s_mul_i32 s4, s8, %d' % (32 * 1280))
for j in range(4): a('v_subrev_u32 %s, s4, %s' % (v(32 + j), v(vDX + j)))
a('s_mul_i32 s4, s8, %d' % (16 * 3072))
for j in range(3): a('v_subrev_u32 %s, s4, %s' % (v(40 + j), v(vDW + j)))
for c in (1, 2):
    ops = dma_ops(c)
    ops[0]()
    a('s_cmp_lg_u32 s8, %d' % (c + 1))
    a('s_cbranch_scc1 L_nosh%d' % c)
    a('s_mov_b32 m0, %d' % SL[c])
    a('s_nop 0')
    for j in range(4): a('buffer_load_dwordx4 %s, %s, s79 offen offset:%d lds' % (v(32 + j), s(rU, 4), 1024 * j))
    a('s_mov_b32 m0, %d' % (SL[c] + 4096))
    a('s_nop 0')
    for j in range(3): a('buffer_load_dwordx4 %s, %s, s80 offen offset:%d lds' % (v(40 + j), s(rW1, 4), 1024 * j))
    a('s_add_u32 m0, s78, %d' % SL[c])
    a('s_nop 0')
    a('L_nosh%d:' % c)
    for f in ops[1:]: f()
a('L_r2done:')
a('v_add_u32 v36, s83, %s' % v(vDMP))
a('s_nop 7\ns_nop 3')
a('s_cmp_eq_u32 s8, 3')
a('s_cbranch_scc1 L_d3')
for i in range(8): a('v_pk_add_f32 %s, %s, %s' % (v(vA2 + 2 * i, 2), v(vA2 + 2 * i, 2), v(vA1 + 2 * i, 2)))
a('s_branch L_dj')
a('L_d3:')
a('v_add_u32 v37, %d, %s' % (L_DMX, v(vDMP)))
for i in range(4): a('ds_write_b128 v37, %s offset:%d' % (v(vA1 + 4 * i, 4), 32 * i))
a('L_dj:')
for i in range(4): a('ds_write_b128 v36, %s offset:%d' % (v(vA2 + 4 * i, 4), 32 * i))
a.wlg0()
a('s_barrier')
stamp('dump')
a('s_cmp_eq_u32 s8, 3')
a('s_cbranch_scc1 L_noexp')
def gather(dst, base, ad):
    for i in range(7): a('v_add_u32 %s, %s, %s' % (v(ad + i), base, v(vE + i)))
    P4 = DP // 4
    a('ds_read2_b32 %s, %s offset0:0 offset1:%d' % (v(dst, 2), v(ad), P4))
    a('ds_read2_b32 %s, %s offset0:%d offset1:%d' % (v(dst + 2, 2), v(ad), 2 * P4, 3 * P4))
    a('ds_read2_b32 %s, %s offset0:0 offset1:%d' % (v(dst + 4, 2), v(ad + 1), P4))
    a('ds_read2_b32 %s, %s offset0:0 offset1:%d' % (v(dst + 6, 2), v(ad + 3), P4))
    a('ds_read_b64 %s, %s' % (v(dst + 8, 2), v(ad + 5)))
    a('ds_read_b32 %s, %s' % (v(dst + 10), v(ad + 2)))
    a('ds_read_b32 %s, %s' % (v(dst + 11), v(ad + 4)))
    a('ds_read_b32 %s, %s' % (v(dst + 12), v(ad + 6)))
gather(112, 's83', 164)
a('''
v_cmp_eq_u32 vcc, 0, v1
s_mul_i32 s4, s8, %d
s_add_u32 s4, s4, %d
v_cndmask_b32 v36, 0, %s, vcc
v_lshlrev_b32 v37, 3, v1
v_add_u32 v37, s4, v37
v_add_u32 v38, s4, v2
v_lshlrev_b32 v39, 5, v1
v_add_u32 v39, s4, v39
v_mov_b32 v40, 0
v_mov_b32 v41, 0
''' % (KLSZ, L_KL, v(vDSK)))
a('s_cmp_eq_u32 s8, 0')
a('s_cbranch_scc1 L_exp1')
a('s_cmp_eq_u32 s8, 1')
a('s_mov_b32 s4, %d' % (3 * TABSZ))
a('s_cselect_b32 s4, %d, s4' % L_DMX)
gather(128, 's4', 172)
a('s_waitcnt lgkmcnt(0)')
for i in range(0, 12, 2): a('v_pk_add_f32 %s, %s, %s' % (v(112 + i, 2), v(112 + i, 2), v(128 + i, 2)))
a('v_add_f32 v124, v124, v140')
a('L_exp1:')
a('s_waitcnt lgkmcnt(0)')
a('v_add_f32 v112, v112, v36')
cv = lambda d, x, y: a('v_cvt_pk_bf16_f32 v%d, v%d, v%d' % (d, x, y))
cv(146, 116, 116); cv(147, 117, 122)
cv(148, 118, 118); cv(149, 118, 119); cv(150, 119, 119); cv(151, 123, 123)
cv(152, 120, 120); cv(153, 120, 120); cv(154, 120, 121); cv(155, 121, 121)
cv(156, 121, 121); cv(157, 121, 121); cv(158, 124, 124); cv(159, 124, 124)
cv(144, 112, 113); cv(145, 114, 115)
a('ds_write_b64 v37, v[40:41]')
a('ds_write_b64 v37, v[146:147] offset:1024')
a('ds_write_b128 v38, v[148:151] offset:1536')
a('ds_write_b128 v39, v[152:155] offset:2560')
a('ds_write_b128 v39, v[156:159] offset:2576')
a('ds_write_b64 v37, v[144:145] offset:512')
if args.dbgK:
    a('s_waitcnt lgkmcnt(0)')
    a('s_mul_i32 s5, s94, 4096')
    a('s_add_u32 s5, s5, %d' % WS_DBG)
    for i in range(4):
        a('ds_read_b128 v[160:163], v38 offset:%d' % (512 + 1024 * i))
        a('s_waitcnt lgkmcnt(0)')
        a('buffer_store_dwordx4 v[160:163], v2, %s, s5 offen offset:%d' % (RWS, 1024 * i))
        a('s_waitcnt vmcnt(0)')
a('L_noexp:')
stamp('exp')

vACC = 48
vF = [96, 112, 128]
vGF = 144
vUL = 160
def xbase(regA, regB, slot):
    return (regB, SL[slot] - SL[1]) if slot in (1, 2) else (regA, SL[slot])
def g1_reads(n):
    c, kk = divmod(n, 4); slot = c % 5; f = vF[n % 3]
    r, off = xbase(vXA + kk, vXB + kk, slot)
    ops = [('x', 'ds_read_b128 %s, %s offset:%d' % (v(f, 4), v(r), off))]
    wb, wo = {0: (vWB + 1, 0), 1: (vWB + 1, SLOT), 2: (vWB + 2, 0), 3: (vWB, 0), 4: (vWB, SLOT)}[slot]
    for j in range(3):
        for h in range(2):
            ops.append(('w%d' % j, 'ds_read_b64_tr_b16 %s, %s offset:%d' % (v(f + 4 + 4 * j + 2 * h, 2), v(wb), wo + kk * 7168 + h * 768 + 64 * j)))
    return ops

a('s_cmp_lg_u32 s8, 0')
a('s_cbranch_scc1 L_w0w')
a('s_waitcnt vmcnt(0)')
a('L_w0w:')
a.wvm(tW2C)
publish('''
s_cmp_ge_u32 s85, 384
s_cbranch_scc1 L_skfw
s_and_b32 s4, s85, 7
s_lshl_b32 s4, s4, 6
s_lshr_b32 s5, s85, 3
s_add_u32 s4, s4, s5
s_lshl_b32 s4, s4, %d
s_add_u32 s4, s4, %d
''' % (FWSH, WS_FW), 'L_skfw')
a('s_barrier')
a('s_lshl_b32 s4, s13, 7')
a('v_add_u32 %s, s4, %s' % (v(vGWc), v(vGW0)))
tok = {}
for n in (0, 1):
    tok[n] = {}
    for nm, ins in g1_reads(n): tok[n][nm] = a.ds(ins)

FUL = 'buffer_load_dwordx2 %s, v32, %s, 0 offen sc1' % (v(vPOLL, 2), RWS)
FWL = 'buffer_load_dwordx2 v[34:35], v33, %s, s86 offen sc1' % RWS
tk = {}
def w2_load(n):
    def f():
        if n % 4 == 0 and n > 0: a('s_add_u32 s87, s87, 4096')
        tk['w2'] = a.vmem('buffer_load_dwordx4 %s, v2, %s, s87 offen offset:%d sc1' % (ac(4 * n, 4), RWS, 1024 * (n % 4)))
    return f
def u_load(ch, j):
    def f():
        r = vUL + 8 * ch
        if j == 0: a.vmem('buffer_load_dwordx4 %s, v2, %s, s%d offen offset:4 sc1' % (v(r + 4, 4), RWS, 88 + ch))
        else: tk['u%d' % ch] = a.vmem('buffer_load_dword %s, v2, %s, s%d offen sc1' % (v(r + 3), RWS, 88 + ch))
    return f
def polls():
    a('''
    v_min_u32 v33, 11, v1
    v_lshlrev_b32 v33, %d, v33
    s_lshl_b32 s86, s11, 6
    s_mul_i32 s87, s8, 12
    s_add_u32 s86, s86, s87
    s_lshl_b32 s86, s86, %d
    s_add_u32 s86, s86, %d
    ''' % (FWSH, FWSH, WS_FW))
    a.vmem(FWL)
def polls2():
    a('''
    s_and_b32 s34, s14, 0x3c0
    s_and_b32 s35, s3, 0x3c0
    s_sub_u32 s35, s35, s34
    s_lshl_b32 s4, s8, 4
    s_add_u32 s34, s34, s4
    v_bfe_u32 v32, v1, 4, 1
    v_mul_u32_u24 v32, s35, v32
    v_and_b32 v36, 15, v1
    v_add3_u32 v32, v32, v36, s34
    v_lshlrev_b32 v32, %d, v32
    ''' % FSH)
    tk['poll'] = a.vmem(FUL)
def check_polls():
    a.wvm(tk['poll'])
    c3 = 'v_cmp_ne_u64 vcc, s[6:7], v[34:35]'
    a(c3); spin('L_sw', FWL, c3)
    c1 = 'v_cmp_ne_u64 vcc, s[6:7], %s' % v(vPOLL, 2)
    a(c1); spin('L_su0', FUL, c1)
def after_polls():
    a('''
    s_lshl_b32 s4, s8, 10
    s_add_u32 s4, s4, %d
    s_mul_i32 s88, s14, %d
    s_add_u32 s88, s88, s4
    s_mul_i32 s89, s15, %d
    s_add_u32 s89, s89, s4
    s_mul_i32 s90, s3, %d
    s_add_u32 s90, s90, s4
    s_mul_i32 s87, s11, 48
    s_mul_i32 s4, s8, 12
    s_add_u32 s87, s87, s4
    s_mul_i32 s87, s87, 5120
    s_add_u32 s87, s87, %d
    s_mul_i32 s4, s99, %d
    s_add_u32 s4, s4, s87
    v_min_u32 v33, 59, v1
    v_lshlrev_b32 v33, 7, v33
    ''' % (WS_UT + 128 - 4, UT_PITCH, UT_PITCH, UT_PITCH, WS_W2P, 60 * 128))
    a.vmem('buffer_load_dword v34, v33, %s, s4 offen sc1' % RWS)
def ustage_setup():
    a('''
    v_lshlrev_b32 v37, 4, v0
    v_add_u32 v37, %d, v37
    v_cmp_eq_u32 vcc, 0, v0
    v_mul_u32_u24 v40, 13108, v1
    v_lshrrev_b32 v40, 16, v40
    v_cndmask_b32 v38, -1, v3, vcc
    v_mul_u32_u24 v41, 5, v40
    v_sub_u32 v41, v1, v41
    v_mul_u32_u24 v40, %d, v40
    v_lshl_add_u32 v40, v41, 3, v40
    v_mov_b32 v42, 0
    v_mov_b32 v43, 0
    ''' % (L_U + 32, UC))
def ustage_pad():
    a('s_cmp_lg_u32 s8, 0')
    a('s_cbranch_scc1 L_nopad')
    a('s_mov_b32 exec_hi, 0x0fffffff')
    a('ds_write_b64 v40, v[42:43] offset:%d' % L_U)
    a('s_mov_b32 exec_hi, -1')
    a('L_nopad:')
def ustage(ch):
    r = vUL + 8 * ch; o = vUL + 24 + 4 * ch
    def f0():
        a.wvm(tk['u%d' % ch])
        a('v_and_b32 %s, v38, %s' % (v(r + 3), v(r + 3)))
        a.ds('ds_write_b128 v37, %s offset:%d' % (v(r + 4, 4), ch * UCH))
        a('v_add_u32 v39, %d, v37' % (ch * UCH + 2 * UC + 4))
    def f1():
        for k in range(4): a('v_alignbit_b32 %s, %s, %s, 16' % (v(o + k), v(r + 4 + k), v(r + 3 + k)))
    def f2():
        a.ds('ds_write2_b32 v39, %s, %s offset0:0 offset1:1' % (v(r + 4), v(r + 5)))
        a.ds('ds_write2_b32 v39, %s, %s offset0:2 offset1:3' % (v(r + 6), v(r + 7)))
        a('v_add_u32 v41, %d, v39' % UC)
    def f3():
        a.ds('ds_write_b128 v37, %s offset:%d' % (v(o, 4), ch * UCH + UC))
    def f4():
        a.ds('ds_write2_b32 v41, %s, %s offset0:0 offset1:1' % (v(o), v(o + 1)))
        a.ds('ds_write2_b32 v41, %s, %s offset0:2 offset1:3' % (v(o + 2), v(o + 3)))
    return [f0, f1, f2, f3, f4]
w2q = [w2_load(n) for n in range(60)]
side = dma_ops(3) + dma_ops(4)
side2 = []
gt = {}
for n in range(40):
    c, kk = divmod(n, 4); slot = c % 5; f = vF[n % 3]
    if kk == 2 and c + 1 < 10:
        b = c + 1
        while b not in tCH: side.pop(0)()
        a.wvm(tCH[b])
        a('s_barrier')
        stamp('B%d' % b, 'g1')
        if 2 <= b and b + 3 < 10: side += dma_ops(b + 3)
        if b == 2: side += [polls, polls2]
        if b == 4:
            while 'poll' not in tk: side.pop(0)()
            check_polls()
            side = [after_polls] + side
        if b == 5: side += [u_load(ch, j) for ch in range(3) for j in range(2)]
        if b == 7:
            side += [w2q.pop(0) for _ in range(args.w2tail)]
            side2 += [ustage_setup]
        if b == 8: side2 += [ustage_pad] + ustage(0) + ustage(1) + ustage(2)
    rd = g1_reads(n + 2) if n + 2 < 40 else []
    tok[n + 2] = {}
    grd = []
    if kk < 2:
        r, off = xbase(vGXA + kk, vGXB + kk, slot)
        grd = [('gx', 'ds_read_b128 %s, %s offset:%d' % (v(vGF + 8 * kk, 4), v(r), off)),
               ('g%d' % kk, 'ds_read_b128 %s, %s offset:%d' % (v(vGF + 8 * kk + 4, 4), v(vGWc), 64 * kk))]
    allrd = [(tok[n + 2], x) for x in rd] + [(gt, x) for x in grd]
    per = [[], [], []]
    for i, r in enumerate(allrd): per[min(2, i * 3 // max(len(allrd), 1))].append(r)
    for j in range(3):
        a.wlg(max(tok[n]['x'], tok[n]['w%d' % j]))
        cin = '0' if n == 0 else v(vACC + 16 * j, 16)
        a('v_mfma_f32_32x32x16_bf16 %s, %s, %s, %s' % (v(vACC + 16 * j, 16), v(f + 4 + 4 * j, 4), v(f, 4), cin))
        for d, (nm, ins) in per[j]: d[nm] = a.ds(ins)
        if side and (j != 1 or len(side) > 8): side.pop(0)()
        if side2 and j != 0: side2.pop(0)()
    if kk == 1:
        a('s_add_u32 s13, s13, 1')
        a('s_cmp_ge_u32 s13, 10')
        a('s_cselect_b32 s13, 0, s13')
        a('s_lshl_b32 s4, s13, 7')
        a('v_add_u32 %s, s4, %s' % (v(vGWc), v(vGW0)))
    if kk >= 2:
        g = kk - 2
        a.wlg(gt['g%d' % g])
        a('v_mfma_f32_16x16x32_bf16 %s, %s, %s, %s' % (v(vGACC, 4), v(vGF + 8 * g + 4, 4), v(vGF + 8 * g, 4), v(vGACC, 4)))
while side: side.pop(0)()
while side2: side2.pop(0)()
stamp('g1')

a('''
v_bfe_u32 v36, v1, 4, 1
v_mul_u32_u24 v36, %d, v36
v_lshrrev_b32 v37, 5, v1
v_lshl_add_u32 v36, v37, 8, v36
v_and_b32 v37, 15, v1
v_lshl_add_u32 v36, v37, 4, v36
s_lshl_b32 s4, s9, 3
s_lshl_b32 s5, s8, 1
s_add_u32 s4, s4, s5
s_mul_i32 s4, s4, 48
s_mul_i32 s5, s10, 3
s_add_u32 s4, s4, s5
s_lshl_b32 s79, s4, 10
s_add_u32 s79, s79, %d
s_mov_b32 s72, 0xbfb8aa3b
s_mov_b32 s73, 0xbfb8aa3b
''' % (48 * 1024, WS_HP))
nsil = args.w2silu
for g in range(6):
    j, p = g // 2, g % 2
    x = vACC + 16 * j + 8 * p
    e = 96 + 8 * (g & 1); o = 112 + 4 * (g & 3)
    for i in range(4): a('v_pk_mul_f32 %s, %s, s[72:73]' % (v(e + 2 * i, 2), v(x + 2 * i, 2)))
    for i in range(8): a('v_exp_f32 %s, %s' % (v(e + i), v(e + i)))
    for i in range(4): a('v_pk_add_f32 %s, %s, 1.0 op_sel_hi:[1,0]' % (v(e + 2 * i, 2), v(e + 2 * i, 2)))
    for i in range(8):
        a('v_rcp_f32 %s, %s' % (v(e + i), v(e + i)))
        if i == 3:
            for _ in range(nsil * (g + 1) // 6 - nsil * g // 6): w2q.pop(0)()
    for i in range(4): a('v_pk_mul_f32 %s, %s, %s' % (v(e + 2 * i, 2), v(e + 2 * i, 2), v(x + 2 * i, 2)))
    for i in range(4): a('v_cvt_pk_bf16_f32 %s, %s, %s' % (v(o + i), v(e + 2 * i), v(e + 2 * i + 1)))
    tH = a.vmem('buffer_store_dwordx4 %s, v36, %s, s79 offen offset:%d sc1' % (v(o, 4), RWS, 1024 * j + 512 * p))
a('''
v_bfe_u32 v40, v1, 2, 2
v_mul_u32_u24 v40, %d, v40
v_and_b32 v41, 3, v1
v_lshl_add_u32 v40, v41, 3, v40
v_lshrrev_b32 v41, 4, v1
v_lshlrev_b32 v42, 4, v41
v_sub_u32 v40, v40, v42
v_add_u32 v32, %d, v40
v_and_b32 v40, 15, v1
v_lshl_add_u32 v40, v40, 5, v42
v_add_u32 v33, %d, v40
''' % (UC, L_U + 56, L_KL + 32))
a.wlg0()
a('s_barrier')
stamp('silu')

FHL = 'buffer_load_dwordx2 %s, v34, %s, s86 offen sc1' % (v(vPOLL, 2), RWS)
def pub_h():
    a.wvm(tH)
    publish('''
    s_lshl_b32 s4, s9, 4
    s_add_u32 s4, s4, s10
    s_lshl_b32 s4, s4, 2
    s_add_u32 s4, s4, s8
    s_lshl_b32 s4, s4, %d
    s_add_u32 s4, s4, %d
    ''' % (FSH, WS_FH))
def poll_h():
    a('''
    v_bfe_u32 v34, v1, 1, 2
    v_and_b32 v35, 1, v1
    v_lshl_add_u32 v34, v34, 2, v35
    v_lshlrev_b32 v34, %d, v34
    s_lshl_b32 s86, s9, 6
    s_lshl_b32 s4, s8, 4
    s_add_u32 s86, s86, s4
    s_lshl_b32 s4, s12, 1
    s_add_u32 s86, s86, s4
    s_lshl_b32 s86, s86, %d
    s_add_u32 s86, s86, %d
    ''' % (FSH, FSH, WS_FH))
    tk['pollh'] = a.vmem(FHL)
def h_addrs():
    a('''
    s_lshl_b32 s4, s9, 3
    s_lshl_b32 s5, s12, 2
    s_add_u32 s4, s4, s5
    s_mul_i32 s4, s4, 48
    s_mul_i32 s5, s8, 12
    s_add_u32 s4, s4, s5
    s_lshl_b32 s4, s4, 10
    s_add_u32 s4, s4, %d
    ''' % WS_HP)
    for n in range(4):
        a('s_add_u32 s5, s76, %d' % (n + 1))
        a('s_and_b32 s5, s5, 3')
        a('s_mul_i32 s5, s5, %d' % (48 * 1024))
        a('s_add_u32 s%d, s4, s5' % (94 + n))
def hreg(n, k):
    if n == 0: return 176 + 4 * k
    if n == 1: return 48 + 4 * k
    if n == 2: return 96 + 4 * k
    return 144 + 4 * k if k < 8 else 224 + 4 * (k - 8)
tHL = {}
def h_load(n, k):
    def f():
        if k in (4, 8): a('s_add_u32 s%d, s%d, 4096' % (94 + n, 94 + n))
        tHL[(n, k)] = a.vmem('buffer_load_dwordx4 %s, v2, %s, s%d offen offset:%d sc1' % (v(hreg(n, k), 4), RWS, 94 + n, 1024 * (k % 4)))
    return f
def conv_pair(accA, accB, gA, sreg, tmp):
    a('v_cvt_pk_bf16_f32 %s, %s, %s' % (v(tmp), v(accA), v(accA + 1)))
    a('v_cvt_pk_bf16_f32 %s, %s, %s' % (v(tmp + 1), v(accA + 2), v(accA + 3)))
    a('v_cvt_pk_bf16_f32 %s, %s, %s' % (v(tmp + 2), v(accB), v(accB + 1)))
    a('v_cvt_pk_bf16_f32 %s, %s, %s' % (v(tmp + 3), v(accB + 2), v(accB + 3)))
    a('s_nop 1')
    a('v_permlane16_swap_b32 %s, %s' % (v(tmp), v(tmp + 2)))
    a('v_permlane16_swap_b32 %s, %s' % (v(tmp + 1), v(tmp + 3)))
    return a.vmem('buffer_store_dwordx4 %s, v36, %s, s%d offen offset:%d sc1' % (v(tmp, 4), RWS, sreg, 512 * gA))
def conv_single(accA, gA, sreg, tmp):
    a('v_cvt_pk_bf16_f32 %s, %s, %s' % (v(tmp), v(accA), v(accA + 1)))
    a('v_cvt_pk_bf16_f32 %s, %s, %s' % (v(tmp + 1), v(accA + 2), v(accA + 3)))
    return a.vmem('buffer_store_dwordx2 %s, v37, %s, s%d offen offset:%d sc1' % (v(tmp, 2), RWS, sreg, 512 * gA))
def split(code):
    return [(lambda l=l: a(l)) for l in code.split('\n') if l.strip()]
STORE_ADDRS = '''
v_and_b32 v38, 15, v1
v_lshlrev_b32 v38, 5, v38
v_lshrrev_b32 v39, 5, v1
v_lshl_add_u32 v36, v39, 4, v38
v_bfe_u32 v39, v1, 4, 1
v_lshl_add_u32 v36, v39, 9, v36
v_lshrrev_b32 v39, 4, v1
v_lshl_add_u32 v37, v39, 3, v38
s_lshl_b32 s88, s14, 12
s_add_u32 s88, s88, %d
s_lshl_b32 s89, s15, 12
s_add_u32 s89, s89, %d
s_lshl_b32 s90, s3, 12
s_add_u32 s90, s90, %d
s_lshl_b32 s80, s2, 12
s_add_u32 s80, s80, 0x%x
''' % (WS_AT, WS_AT, WS_AT, WS_JUNK)

def conv_body(stages, nbuf, bufsz, vBUF, sidework):
    def issue(i, r): return a.ds(r[1](vBUF + (i % nbuf) * bufsz + r[2]))
    toks = [dict() for _ in stages]
    ahead = nbuf - 1
    for i in range(ahead):
        for r in stages[i][0]: toks[i][r[0]] = issue(i, r)
    gi = 0
    for i, (rd, mf) in enumerate(stages):
        nxt = list(stages[i + ahead][0]) if i + ahead < len(stages) else []
        base = vBUF + (i % nbuf) * bufsz
        nm = len(mf); done = 0
        for k, (acc, kA, rA, kB, rB, first) in enumerate(mf):
            a.wlg(max(toks[i][kA], toks[i][kB]))
            a('v_mfma_f32_16x16x32_bf16 %s, %s, %s, %s' % (v(acc, 4), v(base + rA, 4), v(base + rB, 4), '0' if first else v(acc, 4)))
            want = min(len(nxt), -(-len(nxt) * (k + 1) // nm))
            while done < want:
                toks[i + ahead][nxt[done][0]] = issue(i + ahead, nxt[done]); done += 1
            for f in sidework.get(gi, []): f()
            gi += 1

NH0 = args.nh0
def make_side(tag):
    sw = {}
    pos = 1
    for f in w2q:
        sw.setdefault(pos, []).append(f); pos += args.w2step
    assert pos <= args.pollh + args.w2step, pos
    sw.setdefault(args.pubh, []).append(pub_h)
    for i, f in enumerate(split(STORE_ADDRS)): sw.setdefault(20 + 4 * i + 2, []).append(f)
    sw.setdefault(120, []).append(h_addrs)
    sw.setdefault(args.pollh, []).append(poll_h)
    def chk():
        a.wvm(tk['pollh'])
        c_ = 'v_cmp_ne_u64 vcc, s[6:7], %s' % v(vPOLL, 2)
        a(c_); spin('L_sh' + tag, FHL, c_)
    sw.setdefault(args.chkh, []).append(chk)
    for i in range(NH0): sw.setdefault(min(215, args.chkh + 3 * i), []).append(h_load(0, i))
    if 'cv' in args.fine.split(','):
        for p in (54, 108, 162): sw.setdefault(p, []).append(lambda p=p: stamp('cv%d' % p))
    return sw

def build_stage(Gs, accmap, lorder, goff, xoff, xrel, first_stage):
    rd = []; mf = []
    rem = [(i, g - i, g) for g in Gs for i in range(g + 1)]
    order = []; sG = []; sX = []
    for kind, idx in lorder:
        if kind == 'G':
            for h in range(2):
                rd.append(('G%d%s' % (idx, 'a' if h == 0 else ''), (lambda r, o=goff + 512 * idx + (8 if h == 0 else 0): 'ds_read_b64_tr_b16 %s, v32 offset:%d' % (v(r, 2), o)), 4 * idx + 2 * h))
            sG.append(idx)
        else:
            rd.append(('X%d' % idx, (lambda r, o=xoff + 512 * idx: 'ds_read_b128 %s, v33 offset:%d' % (v(r, 4), o)), xrel + 4 * idx))
            sX.append(idx)
        for pr in list(rem):
            if pr[0] in sG and pr[1] in sX: order.append(pr); rem.remove(pr)
    assert not rem
    seen = set()
    for (i, ip, g) in order:
        mf.append((accmap[g], 'G%d' % i, 4 * i, 'X%d' % ip, xrel + 4 * ip, first_stage and g not in seen)); seen.add(g)
    return rd, mf

st0 = a.save(); sn0 = list(stamp_names)
a('s_cmp_eq_u32 s8, 3')
a('s_cbranch_scc1 L_conv3')
a('s_mul_i32 s4, s8, %d' % UCH)
a('v_add_u32 v32, s4, v32')
a('s_mul_i32 s4, s8, %d' % KLSZ)
a('v_add_u32 v33, s4, v33')
Gs = [0, 4, 5, 6, 7]
LO = [('G', 0), ('X', 0), ('X', 4), ('G', 4), ('G', 1), ('X', 3), ('G', 2), ('X', 2), ('G', 3), ('X', 1), ('X', 5), ('G', 5), ('X', 6), ('G', 6), ('X', 7), ('G', 7)]
stages = [build_stage(Gs, {g: 4 + 4 * i for i, g in enumerate(Gs)}, LO, 64 * mp, 64 * (7 - mp), 32, mp == 0) for mp in range(8)]
conv_body(stages, 2, 64, 48, make_side('m'))
a('s_cmp_eq_u32 s77, 0')
a('s_cselect_b32 s90, s80, s90')
a('s_cmp_eq_u32 s8, 1')
a('s_cselect_b32 s88, s89, s88')
a('s_cmp_eq_u32 s8, 2')
a('s_cselect_b32 s88, s90, s88')
a('s_nop 2')
conv_single(4, 0, 88, 38)
conv_pair(8, 12, 4, 88, 40)
conv_pair(16, 20, 6, 88, 44)
st_main = a.save(); tk_main = dict(tk); tHL_main = dict(tHL); sn_main = list(stamp_names)
a('s_branch L_convdone')
a('L_conv3:')
a.restore(st0); stamp_names[:] = sn0
acc3 = [4, 8, 12, 16, 20, 144, 148, 152, 156]
LO3 = [('G', 0), ('X', 1), ('G', 1), ('X', 0), ('X', 2), ('G', 2), ('X', 3), ('G', 3)]
stages = [build_stage((1, 2, 3), {g: acc3[3 * ch + g - 1] for g in (1, 2, 3)}, LO3, ch * UCH + 64 * mp, ch * KLSZ + 64 * (7 - mp), 16, mp == 0)
          for mp in range(8) for ch in range(3)]
conv_body(stages, 3, 32, 48, make_side('w'))
a('s_cmp_eq_u32 s77, 0')
a('s_cselect_b32 s90, s80, s90')
a('s_nop 5')
for ch in range(3):
    conv_single(acc3[3 * ch], 1, 88 + ch, 40 + 2 * ch)
    conv_pair(acc3[3 * ch + 1], acc3[3 * ch + 2], 2, 88 + ch, 160 + 4 * ch)
a('L_convdone:')
a.restore(st_main); tk = tk_main; tHL.clear(); tHL.update(tHL_main); stamp_names[:] = sn_main
tA = a.vm
a.lg_done = a.lg
stamp('conv')

hq = [h_load(n, k) for n in range(4) for k in range(12)][NH0:]
for _ in range(6): hq.pop(0)()
accs = [[4, 8, 12, 16, 20], [40, 44, 240, 244, 248]]
for n in range(3):
    a('s_add_u32 s4, s8, %d' % (n + 1))
    a('s_and_b32 s4, s4, 3')
    a('s_mul_i32 s4, s4, %d' % (3 * 5120))
    if n: a('s_add_u32 s4, s4, %d' % (L_RED + n * 5120))
    a('v_add_u32 v%d, s4, v2' % (32 + n))
a('s_mul_i32 s4, s8, %d' % (3 * 5120))
a('v_add_u32 v35, s4, v2')
FAL0 = 'buffer_load_dwordx2 v[36:37], v28, %s, s86 offen sc1' % RWS
FAL1 = 'buffer_load_dwordx2 v[38:39], v28, %s, s86 offen offset:%d sc1' % (RWS, FSTR)
def pub_a():
    a.wvm(tA)
    publish('''
    s_lshl_b32 s4, s92, 2
    s_add_u32 s4, s4, s8
    s_lshl_b32 s4, s4, %d
    s_add_u32 s4, s4, %d
    ''' % (FSH, WS_FA))
def poll_a():
    a('s_lshl_b32 s86, s11, %d' % (7 + FSH))
    a('s_add_u32 s86, s86, %d' % WS_FA)
    a('v_lshlrev_b32 v28, %d, v1' % (FSH + 1))
    a.vmem(FAL0)
    tk['polla'] = a.vmem(FAL1)
a.wvm(tk['w2'])
redq = []
for n in range(4):
    acc = accs[n & 1]
    for k in range(12):
        a.wvm(tHL[(n, k)])
        for i in range(5):
            a('v_mfma_f32_16x16x32_bf16 %s, %s, %s, %s' % (v(acc[i], 4), ac(4 * (5 * k + i), 4), v(hreg(n, k), 4), '0' if k == 0 else v(acc[i], 4)))
            if i == 1 and hq: hq.pop(0)()
            if i == 3 and redq and k >= 2: redq.pop(0)()
        if n == 0 and k == 9: pub_a()
        if n == 3 and k == 2: poll_a()
    if n < 3:
        for i in range(5):
            def f(i=i, n=n, acc=acc): a.ds('ds_write_b128 v%d, %s offset:%d' % (32 + n, v(acc[i], 4), 1024 * i))
            redq.append(f)
    stamp('g2_%d' % n, 'g2' if n < 3 else None)
assert not redq and not hq
a('''
v_mul_f32 v24, s72, v24
v_exp_f32 v24, v24
s_nop 0
v_add_f32 v24, 1.0, v24
v_rcp_f32 v24, v24
''')
a.wlg0()
a('s_barrier')
vR = 60
rt = []
for n in range(3):
    for i in range(5):
        rt.append(a.ds('ds_read_b128 %s, v35 offset:%d' % (v(vR + 20 * n + 4 * i, 4), n * 5120 + 1024 * i)))
vA = 128
a('''
v_lshrrev_b32 v32, 4, v1
v_mul_u32_u24 v33, %d, v32
v_and_b32 v34, 15, v1
v_lshl_add_u32 v33, v34, 1, v33
s_lshl_b32 s4, s9, 7
s_lshl_b32 s5, s12, 6
s_add_u32 s4, s4, s5
s_lshl_b32 s5, s76, 4
s_add_u32 s79, s4, s5
s_mul_i32 s4, s11, %d
s_lshl_b32 s5, s79, 1
s_add_u32 s4, s4, s5
s_add_u32 s4, s4, %d
''' % (20 * AT_PITCH, 80 * AT_PITCH, WS_AT))
a.wvm(tk['polla'])
CA = 'v_cmp_ne_u64 vcc, s[6:7], v[36:37]\nv_cmp_ne_u64 s[34:35], s[6:7], v[38:39]\ns_or_b64 vcc, vcc, s[34:35]'
a(CA); spin('L_sa', FAL0 + '\n' + FAL1, CA)
stamp('aflag')
ta = []
for j in range(20):
    ta.append(a.vmem('buffer_load_short_d16_hi %s, v33, %s, s4 offen sc1' % (v(vA + j), RWS)))
    if j < 19: a('s_add_u32 s4, s4, %d' % AT_PITCH)
acc = accs[1]
for n in range(3):
    for i in range(5):
        a.wlg(rt[5 * n + i])
        for h in range(2):
            r = acc[i] + 2 * h
            a('v_pk_add_f32 %s, %s, %s' % (v(r, 2), v(r, 2), v(vR + 20 * n + 4 * i + 2 * h, 2)))
a('''
v_mul_u32_u24 v34, 1280, v34
v_mul_u32_u24 v32, 40, v32
v_add_u32 v34, v34, v32
s_mul_i32 s4, s79, 1280
s_mul_i32 s5, s11, 160
s_add_u32 s4, s4, s5
''')
vO = 152
for j in range(0, 20, 2):
    r = acc[j // 4] + (j % 4)
    a.wvm(ta[j + 1])
    a('v_pk_add_f32 %s, %s, %s neg_lo:[0,1] neg_hi:[0,1]' % (v(vA + j, 2), v(vA + j, 2), v(r, 2)))
    a('v_pk_fma_f32 %s, %s, v[24:25], %s op_sel_hi:[1,0,1]' % (v(vA + j, 2), v(vA + j, 2), v(r, 2)))
    a('v_cvt_pk_bf16_f32 %s, %s, %s' % (v(vO + j // 2), v(vA + j), v(vA + j + 1)))
    if j == 6: a.vmem('buffer_store_dwordx4 %s, v34, %s, s4 offen %s' % (v(vO, 4), s(rOUT, 4), args.outfl))
    if j == 14: a.vmem('buffer_store_dwordx4 %s, v34, %s, s4 offen offset:16 %s' % (v(vO + 4, 4), s(rOUT, 4), args.outfl))
a.vmem('buffer_store_dwordx2 %s, v34, %s, s4 offen offset:32 %s' % (v(vO + 8, 2), s(rOUT, 4), args.outfl))
if args.stamps:
    stamp('fin')
    a.wvm0()
    stamp('drain')
    a('''
    s_lshl_b32 s4, s2, 2
    s_add_u32 s4, s4, s8
    s_lshl_b32 s4, s4, 8
    s_add_u32 s4, s4, %d
    v_lshlrev_b32 v32, 3, v1
    s_mov_b64 exec, 0xffffffff
    buffer_store_dwordx2 v[254:255], v32, %s, s4 offen
    ''' % (WS_ST, RWS))
if args.pad:
    a('''
    s_waitcnt vmcnt(0)
    L_padw:
    s_sleep 4
    s_memrealtime s[100:101]
    s_waitcnt lgkmcnt(0)
    s_sub_u32 s100, s100, s6
    s_cmp_lt_u32 s100, %d
    s_cbranch_scc1 L_padw
    ''' % (args.pad * 100))
if args.dbgt:
    a('''
    s_cmp_lg_u32 s8, 0
    s_cbranch_scc1 L_end
    v_subrev_u32 v254, s6, v254
    v_lshlrev_b32 v32, 2, v1
    v_add_u32 v32, 8, v32
    s_mov_b64 exec, 0x3fff
    global_atomic_smax v32, v254, s[44:45] sc1
    ''')
a('L_end:')
a('s_endpgm')
kernel_desc(a, KN, vgpr=512, sgpr=102, accum=256)
LL = ['; @launch grid=(256,1,1) block=(256,1,1) lds=%d' % LDS_SIZE]
wrap = lambda lines: file_text(LL, '\n'.join(lines) + '\n')
lines, size, npro, npad = align(a.lines, wrap)
assert size <= 32 * 9 * 128, size
open(args.o, 'w').write(wrap(lines))
print('code bytes', size, 'promoted', npro, 'padded', npad, 'stamps:', ' '.join(stamp_names))
```

```python
import sys, argparse
sys.path.insert(0, 'exp')
from asmlib import *
from align import align

ap = argparse.ArgumentParser()
ap.add_argument('-o', default='k.s')
ap.add_argument('--stamps', action='store_true')
ap.add_argument('--fine', default='')
ap.add_argument('--dbgK', action='store_true')
ap.add_argument('--pubh', type=int, default=70)
ap.add_argument('--pollh', type=int, default=140)
ap.add_argument('--chkh', type=int, default=178)
ap.add_argument('--w2tail', type=int, default=4)
ap.add_argument('--w2silu', type=int, default=18)
ap.add_argument('--w2step', type=int, default=4)
ap.add_argument('--nh0', type=int, default=12)
ap.add_argument('--puba', type=int, default=23)
ap.add_argument('--polla', type=int, default=36)
ap.add_argument('--chka', type=int, default=43)
ap.add_argument('--sleep', type=int, default=4)
ap.add_argument('--probe', default='')
ap.add_argument('--hstep', type=int, default=3)
ap.add_argument('--nh1', type=int, default=12)
ap.add_argument('--pad', type=int, default=0)
ap.add_argument('--dbgt', action='store_true')
ap.add_argument('--outfl', default='')
ap.add_argument('--pollb', type=int, default=3)
ap.add_argument('--chkb', type=int, default=6)
ap.add_argument('--x', default='')
args = ap.parse_args()
X = set(args.x.split(','))

WS_FU = 0x00000
WS_FW = 0x01000
WS_FH = 0x04000
WS_FA = 0x0a000
WS_UT = 0x100000; UT_PITCH = 4224
WS_AT = 0x500000; AT_PITCH = 4096
WS_W2P = 0x800000
WS_HP = 0x1000000
WS_ST = 0x2000000
WS_DBG = 0x2100000
WS_JUNK = 0x3000000
WS_SIZE = 0x4000000

TP = 272
TABSZ = 53 * TP
SLOT = 28672
L_RING = 4 * TABSZ
SL = [L_RING, L_RING + SLOT, L_RING + 2 * SLOT, 0, SLOT]
L_KL = L_RING + 3 * SLOT
KLSZ = 4608
L_GW = L_KL + 3 * KLSZ
L_DMX = L_GW + 2048
DP = 144
LDS_SIZE = 163840
assert L_DMX + 22 * DP <= LDS_SIZE
L_RED = 0
L_U = 61440
UC = 4160
UCH = 4 * UC


class G(Asm):
    def __init__(self):
        super().__init__()
        self.vm = 0; self.lg = 0; self.vm_done = 0; self.lg_done = 0
    def vmem(self, s_):
        self(s_); self.vm += 1; return self.vm
    def ds(self, s_):
        self(s_); self.lg += 1; return self.lg
    def wvm(self, tok):
        if tok <= self.vm_done: return
        n = min(self.vm - tok, 63)
        assert n >= 0
        self('s_waitcnt vmcnt(%d)' % n); self.vm_done = self.vm - n
    def wlg(self, tok):
        if tok <= self.lg_done: return
        n = min(self.lg - tok, 15)
        self('s_waitcnt lgkmcnt(%d)' % n); self.lg_done = self.lg - n
    def wlg0(self):
        self('s_waitcnt lgkmcnt(0)'); self.lg_done = self.lg
    def wvm0(self):
        self('s_waitcnt vmcnt(0)'); self.vm_done = self.vm
    def save(self): return (self.vm, self.lg, self.vm_done, self.lg_done)
    def restore(self, st): self.vm, self.lg, self.vm_done, self.lg_done = st

def v(i, n=1): return 'v%d' % i if n == 1 else 'v[%d:%d]' % (i, i + n - 1)
def ac(i, n=1): return 'a%d' % i if n == 1 else 'a[%d:%d]' % (i, i + n - 1)
def s(i, n=1): return 's%d' % i if n == 1 else 's[%d:%d]' % (i, i + n - 1)

a = G()
KN = NAME + '_kernel'
kernel_begin(a, KN)

pU, pAre, pAim, pBre, pBim, pCre, pCim, pLdt = 16, 18, 20, 22, 24, 26, 28, 30
pDsk, pX, pW1, pW2, pGW, pOut, pDbg, pWs = 32, 34, 36, 38, 40, 42, 44, 46
rU, rW1, rW2, rWS, rOUT, rGW = 48, 52, 56, 60, 64, 68
RWS = s(rWS, 4)
stamp_names = []
def stamp(name, fine=None):
    if args.probe == name:
        a('s_memrealtime s[100:101]')
    if not args.stamps: return
    if fine and fine not in args.fine.split(','): return
    i = len(stamp_names); stamp_names.append(name)
    assert i < 32
    a('s_memrealtime s[100:101]')
    a('s_memtime s[0:1]')
    a('s_waitcnt lgkmcnt(0)'); a.lg_done = a.lg
    a('v_writelane_b32 v254, s100, %d' % i)
    a('v_writelane_b32 v255, s0, %d' % i)

vDX, vDW, vGW0, vXA, vXB, vWB, vGWc, vGACC, vPOLL = 4, 8, 11, 12, 16, 20, 23, 24, 28
vGXA, vGXB = 44, 46

a('s_cmp_ge_u32 s2, 256')
a('s_cbranch_scc1 L_end')
a('s_load_dwordx16 s[16:31], s[0:1], 0')
a('s_load_dwordx16 s[32:47], s[0:1], 64')
a('s_memrealtime s[6:7]')
a('s_getpc_b64 s[4:5]')
a('L_pc:')
a('''
s_lshr_b32 s86, s2, 3
s_mul_i32 s87, s86, 9
v_min_u32 v32, 8, v0
v_add_u32 v32, s87, v32
v_lshlrev_b32 v32, 7, v32
v_min_u32 v32, L_codeend-L_pc-4, v32
''')
a.vmem('global_load_dword v33, v32, s[4:5]')
if args.stamps:
    a('v_mov_b32 v254, 0\nv_mov_b32 v255, 0')
a('''
v_and_b32 v1, 63, v0
v_lshrrev_b32 v34, 6, v0
v_lshlrev_b32 v2, 4, v1
v_readfirstlane_b32 s8, v34
s_and_b32 s4, s2, 7            ; xcd
s_lshr_b32 s92, s2, 4
s_lshl_b32 s92, s92, 3
s_add_u32 s92, s92, s4         ; cw
s_and_b32 s93, s86, 1          ; small ?
s_xor_b32 s77, s93, 1          ; big
s_mul_i32 s14, s92, 5
s_mul_i32 s94, s93, 3
s_add_u32 s14, s14, s94        ; c0
s_add_u32 s15, s14, 1          ; c1
s_add_u32 s3, s15, s77
s_cmp_eq_u32 s8, 0
s_cselect_b32 s94, s14, s3
s_cmp_eq_u32 s8, 1
s_cselect_b32 s94, s15, s94
s_cmp_eq_u32 s8, 3
s_cselect_b32 s95, s15, s94
s_cselect_b32 s96, 256, 0
s_cselect_b32 s97, 128, 0
v_cmp_gt_u32 vcc, 32, v1
v_mov_b32 v35, s94
v_mov_b32 v36, s95
v_cndmask_b32 v64, v35, v36, vcc
v_mov_b32 v35, s97
v_mov_b32 v36, s96
v_cndmask_b32 v63, v35, v36, vcc
v_mul_u32_u24 v35, 384, v64
v_add_u32 v63, v63, v35
v_lshl_add_u32 v63, v1, 2, v63
v_lshlrev_b32 v64, 1, v64
v_mov_b32 v3, 0
s_lshr_b32 s9, s4, 1
s_lshl_b32 s9, s9, 2
s_lshr_b32 s98, s86, 3         ; rl
s_add_u32 s9, s9, s98          ; rb
s_and_b32 s87, s4, 1
s_and_b32 s88, s86, 7          ; cl
s_lshl_b32 s10, s87, 3
s_add_u32 s10, s10, s88        ; cb
s_mul_i32 s13, s88, 5
s_lshr_b32 s13, s13, 2
s_mul_i32 s90, s98, 10
s_lshr_b32 s90, s90, 2
s_add_u32 s13, s13, s90
s_add_u32 s13, s13, s87
s_cmp_ge_u32 s13, 10
s_cselect_b32 s90, 10, 0
s_sub_u32 s13, s13, s90
s_mov_b32 s84, s13
s_mov_b32 s81, s13
s_mul_i32 s78, s8, 7168
''')
a('''
v_lshrrev_b32 v36, 3, v1
s_lshl_b32 s4, s9, 7
s_lshl_b32 s5, s8, 5
s_add_u32 s4, s4, s5
v_add_u32 v36, s4, v36
v_mul_u32_u24 v36, 1280, v36
v_and_b32 v37, 7, v1
v_lshrrev_b32 v38, 4, v1
v_xor_b32 v37, v37, v38
v_lshlrev_b32 v37, 4, v37
v_add_u32 v4, v36, v37
v_xor_b32 v37, 64, v37
v_add_u32 v5, v36, v37
v_add_u32 v5, %d, v5
v_add_u32 v6, %d, v4
v_add_u32 v7, %d, v5
''' % (10240 - 1024, 2 * (10240 - 1024), 2 * (10240 - 1024)))
a('s_waitcnt lgkmcnt(0)')
stamp('karg')
vRAW, vDT, vP2, vDSK = 48, 54, 56, 62
for j, ptr in enumerate((pAre, pAim, pBre, pBim, pCre, pCim)):
    a.vmem('global_load_dword %s, v63, %s' % (v(vRAW + j), s(ptr, 2)))
tPAR = a.vmem('global_load_short_d16_hi %s, v64, %s' % (v(vDT), s(pLdt, 2)))
srd(a, rU, pU, 2621440)
srd(a, rW1, pW1, 640 * 1536 * 2)

def dma_setup():
    a('s_lshl_b32 s79, s81, 7')
    a('s_mul_i32 s80, s81, %d' % (64 * 3072))
    a('s_add_u32 s81, s81, 1')
    a('s_cmp_ge_u32 s81, 10')
    a('s_cselect_b32 s81, 0, s81')
tCH = {}; tCHX = {}
def dma_ops(c, restore_m0=False):
    ops = []
    for j in range(7):
        def f(j=j):
            if j == 0: dma_setup()
            if restore_m0 or j in (0, 4):
                off = SL[c % 5] + (4096 if j >= 4 else 0)
                a('s_add_u32 m0, s78, %d' % off if off else 's_mov_b32 m0, s78')
                a('s_nop 0')
            if j < 4:
                t = a.vmem('buffer_load_dwordx4 %s, %s, s79 offen offset:%d lds' % (v(vDX + j), s(rU, 4), 1024 * j))
                tCHX[c] = t
            else:
                t = a.vmem('buffer_load_dwordx4 %s, %s, s80 offen offset:%d lds' % (v(vDW + j - 4), s(rW1, 4), 1024 * (j - 4)))
                if j == 6: tCH[c] = t
            if restore_m0: a('s_mov_b32 m0, s83')
        ops.append(f)
    return ops
c0ops = dma_ops(0)
for f in c0ops[:4]: f()
a('s_mov_b32 s82, s80')
a('''
v_min_u32 v36, 59, v1
v_mul_u32_u24 v37, 5462, v36
v_lshrrev_b32 v37, 16, v37
v_mul_u32_u24 v38, 12, v37
v_sub_u32 v38, v36, v38
v_mul_u32_u24 v37, 3072, v37
v_lshl_add_u32 v65, v38, 7, v37
s_lshl_b32 s95, s86, 2
s_add_u32 s95, s95, s8
s_mul_i32 s95, s95, %d
s_mul_i32 s96, s87, 1536
s_add_u32 s95, s95, s96
''' % (5 * 3072))
a.vmem('buffer_load_dword v67, v65, %s, s95 offen' % s(rW1, 4))
a('''
s_mul_i32 s4, s8, %d
s_mul_i32 s5, s10, 192
s_add_u32 s4, s4, s5
''' % (16 * 3072))
for j in range(3):
    a('''
    v_add_u32 v36, %d, v1
    v_mul_u32_u24 v37, 5462, v36
    v_lshrrev_b32 v37, 16, v37
    v_mul_u32_u24 v38, 12, v37
    v_sub_u32 v38, v36, v38
    v_mul_u32_u24 v37, 3072, v37
    v_lshl_add_u32 v37, v38, 4, v37
    v_add_u32 v37, s4, v37
    v_subrev_u32 %s, %d, v37
    ''' % (64 * j, v(vDW + j), 1024 * j))
srd(a, rW2, pW2, 640 * 1536 * 2)
srd(a, rWS, pWs, WS_SIZE)
srd(a, rOUT, pOut, 2621440)
srd(a, rGW, pGW, 1280)
a('''
s_or_b32 s6, s6, 1
s_or_b32 s4, s2, s8
s_cmp_lg_u32 s4, 0
s_cbranch_scc1 L_nononce
v_mov_b32 v36, s6
global_store_dword v3, v36, s[44:45] sc1
L_nononce:
''')
a('''
s_lshr_b32 s12, s88, 2         ; half
s_and_b32 s89, s88, 3
s_lshl_b32 s11, s87, 2
s_add_u32 s11, s11, s89        ; cb8
s_add_u32 s76, s8, s89
s_and_b32 s76, s76, 3          ; own tile
s_cmp_eq_u32 s89, 3
s_cselect_b32 s91, 1, 0
s_cmp_eq_u32 s87, 0
s_cselect_b32 s91, 1, s91      ; transposer predicate
s_lshl_b32 s92, s92, 1
s_add_u32 s92, s92, s93        ; o
s_lshl_b32 s99, s98, 1
s_add_u32 s99, s99, s12        ; sharer index of the W2' slice
s_lshl_b32 s85, s8, 8
s_sub_u32 s85, s85, 256
s_add_u32 s85, s85, s2         ; W2 job id
s_mul_i32 s83, s8, %d
s_mov_b32 s72, 0x3fb8aa3b
s_mov_b32 s73, 0x3e22f983
s_mov_b32 s74, 0x4138aa3b
s_mov_b32 s75, 0x3fa2f983
s_mov_b32 s93, 0xffff0000
''' % TABSZ)

vKA, vKB, vDMP, vE = 68, 69, 70, 72
a('''
v_and_b32 v36, 31, v1
v_lshrrev_b32 v37, 5, v1
v_mul_u32_u24 v38, %d, v36
v_lshl_add_u32 v38, v37, 4, v38
v_add_u32 v68, s83, v38
v_min_u32 v38, 20, v36
v_add_u32 v38, 32, v38
v_mul_u32_u24 v38, %d, v38
v_lshl_add_u32 v38, v37, 4, v38
v_add_u32 v69, s83, v38
v_min_u32 v38, 21, v36
v_mul_u32_u24 v38, %d, v38
v_lshl_add_u32 v70, v37, 4, v38
''' % (TP, TP, DP))
a('''
v_lshrrev_b32 v38, 1, v1
v_and_b32 v38, 7, v38
v_xor_b32 v38, v38, v37
v_lshlrev_b32 v38, 4, v38
v_lshl_add_u32 v38, v36, 7, v38
v_add_u32 v12, s78, v38
v_xor_b32 v13, 32, v12
v_xor_b32 v14, 64, v12
v_xor_b32 v15, 96, v12
''')
for k in range(4): a('v_add_u32 %s, %d, %s' % (v(vXB + k), SL[1], v(vXA + k)))
a('''
v_bfe_u32 v38, v1, 2, 2
v_lshl_add_u32 v38, v37, 3, v38
v_mul_u32_u24 v38, 192, v38
v_bfe_u32 v39, v1, 4, 1
v_lshl_add_u32 v38, v39, 5, v38
v_and_b32 v39, 3, v1
v_lshl_add_u32 v38, v39, 3, v38
v_add_u32 v20, %d, v38
v_add_u32 v21, %d, v38
v_add_u32 v22, %d, v38
''' % (4096, 4096 + SL[0], 4096 + SL[2]))
a('''
s_lshl_b32 s4, s12, 1
s_lshr_b32 s5, s76, 1
s_add_u32 s4, s4, s5
s_mul_i32 s4, s4, 7168
s_and_b32 s5, s76, 1
s_lshl_b32 s5, s5, 11
s_add_u32 s4, s4, s5
v_and_b32 v38, 15, v1
v_lshrrev_b32 v39, 4, v1
v_lshrrev_b32 v40, 1, v38
v_xor_b32 v40, v40, v39
v_lshlrev_b32 v40, 4, v40
v_lshl_add_u32 v40, v38, 7, v40
v_add_u32 v44, s4, v40
v_xor_b32 v45, 64, v44
v_add_u32 v46, %d, v44
v_add_u32 v47, %d, v45
v_lshlrev_b32 v11, 4, v39
v_add_u32 v11, %d, v11
v_mov_b32 v24, 0
v_mov_b32 v25, 0
v_mov_b32 v26, 0
v_mov_b32 v27, 0
''' % (SL[1], SL[1], L_GW))
a('''
v_and_b32 v38, 1, v1
v_lshrrev_b32 v39, 1, v1
v_lshlrev_b32 v39, 2, v39
v_mul_u32_u24 v40, %d, v38
v_add_u32 v72, v40, v39
v_mul_u32_u24 v40, %d, v38
v_add_u32 v73, v40, v39
v_add_u32 v73, %d, v73
v_add_u32 v41, 1, v1
v_and_b32 v38, 1, v41
v_lshrrev_b32 v39, 1, v41
v_lshlrev_b32 v39, 2, v39
v_mul_u32_u24 v40, %d, v38
v_add_u32 v74, v40, v39
v_add_u32 v74, %d, v74
v_cmp_eq_u32 vcc, 63, v1
v_mov_b32 v42, %d
s_nop 0
v_cndmask_b32 v74, v74, v42, vcc
v_lshrrev_b32 v38, 5, v1
v_and_b32 v39, 31, v1
v_mul_u32_u24 v38, %d, v38
v_lshl_add_u32 v75, v39, 2, v38
v_add_u32 v75, %d, v75
v_lshrrev_b32 v38, 5, v41
v_and_b32 v39, 31, v41
v_mul_u32_u24 v38, %d, v38
v_lshl_add_u32 v76, v39, 2, v38
v_add_u32 v76, %d, v76
v_lshrrev_b32 v38, 4, v1
v_and_b32 v39, 15, v1
v_mul_u32_u24 v38, %d, v38
v_lshl_add_u32 v77, v39, 3, v38
v_add_u32 v77, %d, v77
v_lshrrev_b32 v38, 4, v41
v_and_b32 v39, 15, v41
v_mul_u32_u24 v38, %d, v38
v_lshl_add_u32 v78, v39, 3, v38
v_add_u32 v78, %d, v78
''' % (4 * DP, 2 * DP, 8 * DP, 2 * DP, 8 * DP, 12 * DP, 2 * DP, 12 * DP, 2 * DP, 12 * DP, DP, 16 * DP, DP, 16 * DP))

a.vmem('global_load_short_d16_hi %s, v64, %s' % (v(vDSK), s(pDsk, 2)))
PADL = 'global_load_short_d16_hi v66, v64, %s' % s(pDsk, 2)
a('''
s_cmp_eq_u32 s8, 0
s_cbranch_scc1 L_r0
s_cmp_eq_u32 s8, 3
s_cbranch_scc1 L_r3
s_cmp_ge_u32 s85, 384
s_cbranch_scc1 L_rp6
s_lshr_b32 s4, s85, 3
s_mul_i32 s4, s4, %d
s_and_b32 s5, s85, 7
s_mul_i32 s5, s5, 160
s_add_u32 s4, s4, s5
s_mul_i32 s5, s8, 5120
s_add_u32 m0, s5, %d
''' % (32 * 1280, L_KL - 5120))
for j in range(5):
    a('''
    v_add_u32 v36, %d, v1
    v_mul_u32_u24 v37, 6554, v36
    v_lshrrev_b32 v37, 16, v37
    v_mul_u32_u24 v38, 10, v37
    v_sub_u32 v38, v36, v38
    v_mul_u32_u24 v37, 1280, v37
    v_lshl_add_u32 v37, v38, 4, v37
    buffer_load_dwordx4 v37, %s, s4 offen lds
    s_add_u32 m0, m0, 1024
    ''' % (64 * j, s(rW2, 4)))
a('s_waitcnt vmcnt(%d)' % (a.vm - tPAR + 5))
a('s_branch L_rdone')
a('L_r0:')
a('s_mul_i32 s4, s14, 384')
a('s_add_u32 s4, s4, 256')
a('v_lshlrev_b32 v36, 1, v1')
a('v_add_u32 v36, s4, v36')
for j, ptr in enumerate((pAre, pAim, pBre, pBim, pCre, pCim)):
    a('global_load_short_d16_hi %s, v36, %s' % (v(vP2 + j), s(ptr, 2)))
a('s_waitcnt vmcnt(%d)' % (a.vm - tPAR + 6))
a('s_branch L_rdone')
a('L_r3:')
a('''
s_mul_i32 s4, s98, 10
s_lshr_b32 s4, s4, 2
s_add_u32 s4, s4, s87
s_add_u32 s4, s4, 4
s_cmp_ge_u32 s4, 10
s_cselect_b32 s5, 10, 0
s_sub_u32 s4, s4, s5
s_cmp_ge_u32 s4, 5
s_cselect_b32 s5, 5, 0
s_sub_u32 s4, s4, s5           ; missing chunk mod 5
s_lshl_b32 s4, s4, 7
s_lshl_b32 s5, s9, 3
s_add_u32 s5, s5, s88
s_mul_i32 s5, s5, %d
s_add_u32 s4, s4, s5
v_and_b32 v36, 31, v1
v_mul_u32_u24 v36, 640, v36
buffer_load_dword v66, v36, %s, s4 offen
''' % (16 * 1280, s(rU, 4)))
a('s_mov_b32 m0, %d' % L_GW)
a('s_nop 0')
a('buffer_load_dwordx4 v2, %s, 0 offen lds' % s(rGW, 4))
a('buffer_load_dwordx4 v2, %s, 0 offen offset:1024 lds' % s(rGW, 4))
a('s_waitcnt vmcnt(%d)' % (a.vm - tPAR + 3))
a('s_branch L_rdone')
a('L_rp6:')
a('s_waitcnt vmcnt(%d)' % (a.vm - tPAR))
a('L_rdone:')
a.vm_done = tPAR
nX0 = a.vm - tCHX[0]
a.vm += 1; tROLE = a.vm
stamp('par')

vA1, vA2 = 80, 96
vSET = [112, 118]
vW = 124
def cmul(d, x, y, t):
    return ('v_pk_mul_f32 %s, %s, %s op_sel:[0,0] op_sel_hi:[1,0]' % (v(t, 2), v(x, 2), v(y, 2)),
            'v_pk_fma_f32 %s, %s, %s, %s op_sel:[1,1,0] op_sel_hi:[0,1,1] neg_lo:[1,0,0]' % (v(d, 2), v(x, 2), v(y, 2), v(t, 2)))

def kgen_setup(k, tmp):
    Q1, Z, S0 = vSET[k & 1], vSET[k & 1] + 2, vSET[k & 1] + 4
    if k < 2:
        P = tmp
        if k == 0:
            a('v_mul_f32 %s, s72, %s' % (v(vDT), v(vDT)))
            a('v_exp_f32 %s, %s' % (v(vDT), v(vDT)))
        for j in range(6):
            a(('v_lshlrev_b32 %s, 16, %s' if k == 0 else 'v_and_b32 %s, s93, %s') % (v(P + j), v(vRAW + j)))
            if k == 0 and j == 1: a('v_cvt_pk_bf16_f32 %s, %s, %s' % (v(vDT), v(vDT), v(vDT)))
            if k == 0 and j == 3: a('v_and_b32 %s, s93, %s' % (v(vDT), v(vDT)))
    else:
        P = vP2
    l1, l8, cs1, cs8, m, bc, t0 = [tmp + 6 + 2 * i for i in range(7)]
    m0_, m1_ = cmul(bc, P + 2, P + 4, t0)
    a('v_pk_mul_f32 %s, %s, %s op_sel_hi:[1,0]' % (v(l8, 2), v(P, 2), v(vDT, 2)))
    a(m0_)
    a('v_pk_mul_f32 %s, %s, s[72:73]' % (v(l1, 2), v(l8, 2)))
    a('v_pk_mul_f32 %s, %s, s[74:75]' % (v(l8, 2), v(l8, 2)))
    a(m1_)
    a('v_fract_f32 %s, %s' % (v(l1 + 1), v(l1 + 1)))
    a('v_fract_f32 %s, %s' % (v(l8 + 1), v(l8 + 1)))
    a('v_exp_f32 %s, %s' % (v(m + 1), v(l8)))
    a('v_exp_f32 %s, %s' % (v(m), v(l1)))
    a('v_cos_f32 %s, %s' % (v(cs8), v(l8 + 1)))
    a('v_sin_f32 %s, %s' % (v(cs8 + 1), v(l8 + 1)))
    a('v_cos_f32 %s, %s' % (v(cs1), v(l1 + 1)))
    a('v_sin_f32 %s, %s' % (v(cs1 + 1), v(l1 + 1)))
    a('v_pk_mul_f32 %s, %s, %s op_sel:[0,1] op_sel_hi:[1,1]' % (v(Q1, 2), v(cs8, 2), v(m, 2)))
    a('v_pk_mul_f32 %s, %s, %s op_sel_hi:[1,0]' % (v(S0, 2), v(bc, 2), v(vDT, 2)))
    a('v_pk_mul_f32 %s, %s, %s op_sel_hi:[1,0]' % (v(Z, 2), v(cs1, 2), v(m, 2)))

GROUPS = [[('Q2','Q1','Q1'),('S1','S0','Z')], [('Q4','Q2','Q2'),('Q3','Q2','Q1'),('S2','S1','Z')],
          [('Q8','Q4','Q4'),('Q5','Q4','Q1'),('S3','S2','Z'),('Q6','Q4','Q2')],
          [('Q16','Q8','Q8'),('Q7','Q4','Q3'),('S4','S3','Z'),('Q9','Q8','Q1')],
          [('Q32','Q16','Q16'),('Q10','Q8','Q2'),('S5','S4','Z'),('Q11','Q8','Q3')],
          [('S8','S0','Q32'),('Q12','Q8','Q4'),('S6','S5','Z'),('Q13','Q8','Q5')],
          [('S12','S8','Q32'),('S10','S4','Q32'),('S7','S6','Z'),('Q14','Q8','Q6')],
          [('S14','S12','Q32'),('S13','S10','Q32'),('S9','S2','Q32'),('Q15','Q8','Q7')],
          [('S16','S14','Q32'),('S15','S13','Q32'),('S11','S6','Q32'),('Q17','Q16','Q1')],
          [('S17','S16','Q32'),('Q18','Q16','Q2'),('Q19','Q16','Q3'),('Q20','Q16','Q4')],
          [('S18','S17','Q32'),('Q21','Q16','Q5'),('Q22','Q16','Q6'),('Q23','Q16','Q7')],
          [('S19','S18','Q32'),('Q24','Q16','Q8'),('Q25','Q16','Q9'),('Q26','Q16','Q10')],
          [('S20','S19','Q32'),('Q27','Q16','Q11'),('Q28','Q16','Q12'),('Q29','Q16','Q13')],
          [('Q30','Q16','Q14'),('Q31','Q16','Q15')]]
def kgen_body(k, side):
    R = {'Q1': vSET[k & 1], 'Z': vSET[k & 1] + 2, 'S0': vSET[k & 1] + 4}
    tmps = [vW + 2 * i for i in range(4)]
    cv = [vW + 8 + i for i in range(10)]
    nxt = vW + 18
    pend = ['S0', 'Q1']
    def flush():
        for i, nm in enumerate(pend):
            a('v_cvt_pk_bf16_f32 %s, %s, %s%s' % (v(cv[i]), v(R[nm]), '' if nm[0] == 'Q' else '-', v(R[nm] + 1)))
        for i, nm in enumerate(pend):
            row = int(nm[1:]) + (0 if nm[0] == 'Q' else 32)
            a.ds('ds_write_addtid_b32 %s offset:%d' % (v(cv[i]), row * TP))
        pend.clear()
        if side: side.pop(0)()
    for gi, grp in enumerate(GROUPS):
        ins = []
        for i, (nm, x, y) in enumerate(grp):
            R[nm] = nxt; nxt += 2
            ins.append(cmul(R[nm], R[x], R[y], tmps[i]))
        for m_, f_ in ins: a(m_)
        for m_, f_ in ins: a(f_)
        pend += [nm for nm, _, _ in grp if nm != 'Q32']
        if gi % 2 == 1: flush()
    assert not pend and nxt <= 250
    while side: side.pop(0)()
vFR = 160
def kgen_reads():
    toks = []
    a.wlg0()
    for kk in range(8):
        a.ds('ds_read_b128 %s, %s offset:%d' % (v(vFR + 8 * kk, 4), v(vKA), 32 * kk))
        toks.append(a.ds('ds_read_b128 %s, %s offset:%d' % (v(vFR + 8 * kk + 4, 4), v(vKB), 32 * kk)))
    return toks
def kgen_mfma(toks, first):
    for kk in range(8):
        a.wlg(toks[kk])
        acc = vA1 if kk < 4 else vA2
        c = '0' if (first and kk in (0, 4)) else v(acc, 16)
        a('v_mfma_f32_32x32x16_bf16 %s, %s, %s, %s' % (v(acc, 16), v(vFR + 8 * kk, 4), v(vFR + 8 * kk + 4, 4), c))

def spin(label, load, cmp_):
    a('s_cbranch_vccz %s_ok' % label)
    a('s_mov_b32 s82, 0x40000')
    a('%s_lp:' % label)
    a('s_sleep 1')
    a(load)
    a('s_waitcnt vmcnt(0)')
    a(cmp_)
    a('s_sub_u32 s82, s82, 1')
    a('s_cmp_eq_u32 s82, 0')
    a('s_cbranch_scc1 %s_ok' % label)
    a('s_cbranch_vccnz %s_lp' % label)
    a('%s_ok:' % label)

a('s_mov_b32 m0, s83')
a('v_mov_b32 v36, 0x3f80')
a.ds('ds_write_addtid_b32 v36 offset:0')
kgen_setup(0, vW)
kgen_body(0, [])
NL = 'global_load_dword v30, v3, s[44:45] sc1'
tk0 = kgen_reads()
kgen_setup(1, vW)
kgen_mfma(tk0, True)
stamp('r0')

st = a.save()
a('s_cmp_eq_u32 s91, 0')
a('s_cbranch_scc1 L_notr')
a('''
s_cmp_eq_u32 s8, 3
s_cbranch_scc1 L_tw3
s_cmp_eq_u32 s8, 0
s_cbranch_scc1 L_tw5
s_cmp_lt_u32 s85, 384
s_cbranch_scc1 L_tw5
s_waitcnt vmcnt(%d)
L_tw3:
s_waitcnt vmcnt(%d)
L_tw5:
s_waitcnt vmcnt(%d)
''' % (nX0, nX0 + 3, nX0 + 5))
a('''
v_bfe_u32 v36, v1, 2, 2
v_and_b32 v37, 3, v1
v_lshl_add_u32 v38, v37, 3, v36
v_lshrrev_b32 v39, 5, v1
v_bfe_u32 v40, v1, 4, 1
v_lshrrev_b32 v41, 1, v38
v_and_b32 v41, 7, v41
v_xor_b32 v41, v41, v39
v_lshlrev_b32 v41, 4, v41
v_lshl_add_u32 v41, v38, 7, v41
v_lshl_add_u32 v41, v40, 3, v41
v_add_u32 v41, s78, v41
v_xor_b32 v42, 32, v41
v_xor_b32 v43, 64, v41
v_xor_b32 v40, 96, v41
''')
xr = {0: 41, 32: 42, 64: 43, 96: 40}
toks = []
for n in range(4):
    for h in range(2):
        toks.append(a.ds('ds_read_b64_tr_b16 %s, v%d offset:%d' % (v(224 + 4 * n + 2 * h, 2), xr[(32 * n) ^ (32 * h)], SL[0] + 512 * h)))
a('''
v_lshrrev_b32 v38, 4, v1
v_lshl_add_u32 v38, v38, 2, v37
v_mul_u32_u24 v38, %d, v38
v_lshl_add_u32 v36, v36, 4, v38
s_mul_i32 s4, s84, %d
s_lshl_b32 s5, s9, 8
s_add_u32 s4, s4, s5
s_lshl_b32 s5, s8, 6
s_add_u32 s4, s4, s5
s_add_u32 s4, s4, %d
''' % (UT_PITCH, 64 * UT_PITCH, WS_UT + 128))
for n in range(4):
    a.wlg(toks[2 * n + 1])
    a('buffer_store_dwordx4 %s, v36, %s, s4 offen sc1' % (v(224 + 4 * n, 4), RWS))
    a('s_add_u32 s4, s4, %d' % (16 * UT_PITCH))
a('L_notr:')
a.restore(st)
tCHORE = a.vmem(NL)
stamp('chore')
def w0op(j):
    def f():
        a('s_add_u32 m0, s78, %d' % (SL[0] + 4096))
        a('s_nop 0')
        t = a.vmem('buffer_load_dwordx4 %s, %s, s82 offen offset:%d lds' % (v(vDW + j), s(rW1, 4), 1024 * j))
        if j == 2: tCH[0] = t
        a('s_mov_b32 m0, s83')
    return f
nop = lambda: None
kgen_body(1, [nop, nop, nop, nop, w0op(0), w0op(1), w0op(2)])
tk1 = kgen_reads()
def publish(soff_code, skip=None):
    a(soff_code)
    a('s_mov_b64 exec, 1')
    ins = 'buffer_store_dword v30, v3, %s, s4 offen sc1' % RWS
    if skip: a(ins)
    else: a.vmem(ins)
    a('s_mov_b64 exec, -1')
    if skip: a(skip + ':')
def scheck(label, regs, vaddr_code, soff):
    for i, r in enumerate(regs):
        a('s_cmp_lg_u64 %s, s[6:7]' % s(r, 2))
        a('s_cbranch_scc1 %s_slow' % label)
    cold.append((label, vaddr_code, soff))
    a('%s_ok:' % label)
cold = []
kgen_mfma(tk1, False)
a('s_cmp_lg_u32 s91, 0')
a('s_cbranch_scc1 L_rw8')
a('s_waitcnt vmcnt(%d)' % (a.vm - tROLE))
a('L_rw8:')
a('s_waitcnt vmcnt(%d)' % (a.vm - tROLE + 4))
a.vm_done = tROLE
stamp('r1')
a('s_cmp_lg_u32 s8, 0')
a('s_cbranch_scc1 L_nor2')
kgen_setup(2, vW)
kgen_body(2, [])
kgen_mfma(kgen_reads(), False)
dma_setup(); dma_setup()
a('s_branch L_r2done')
a('L_nor2:')
st = a.save()
a('''
s_cmp_ge_u32 s85, 384
s_cbranch_scc1 L_now2
v_lshrrev_b32 v36, 5, v1
v_bfe_u32 v37, v1, 4, 1
v_bfe_u32 v38, v1, 2, 2
v_lshl_add_u32 v38, v37, 2, v38
v_lshl_add_u32 v38, v36, 4, v38
v_mul_u32_u24 v38, 160, v38
v_and_b32 v39, 3, v1
v_mul_u32_u24 v39, 40, v39
v_add_u32 v38, v38, v39
s_mul_i32 s4, s8, 5120
s_add_u32 s4, s4, %d
v_add_u32 v38, s4, v38
''' % (L_KL - 5120))
toks = []
for i in range(5):
    for h in range(2):
        toks.append(a.ds('ds_read_b64_tr_b16 %s, v38 offset:%d' % (v(140 + 4 * i + 2 * h, 2), 8 * i + 1280 * h)))
a('''
s_and_b32 s4, s85, 7
s_mul_i32 s4, s4, 48
s_lshr_b32 s5, s85, 3
s_add_u32 s4, s4, s5
s_mul_i32 s4, s4, 5120
s_add_u32 s4, s4, %d
s_add_u32 s5, s4, 4096
''' % WS_W2P)
for i in range(5):
    a.wlg(toks[2 * i + 1])
    if i < 4: a('buffer_store_dwordx4 %s, v2, %s, s4 offen offset:%d sc1' % (v(140 + 4 * i, 4), RWS, 1024 * i))
    else: a('buffer_store_dwordx4 %s, v2, %s, s5 offen sc1' % (v(140 + 4 * i, 4), RWS))
a('s_nop 0')
a('L_now2:')
a.restore(st)

a.vm += 1; tW2C = a.vm
a('s_mul_i32 s4, s8, %d' % (32 * 1280))
for j in range(4): a('v_subrev_u32 %s, s4, %s' % (v(32 + j), v(vDX + j)))
a('s_mul_i32 s4, s8, %d' % (16 * 3072))
for j in range(3): a('v_subrev_u32 %s, s4, %s' % (v(40 + j), v(vDW + j)))
for c in (1, 2):
    ops = dma_ops(c)
    ops[0]()
    a('s_cmp_lg_u32 s8, %d' % (c + 1))
    a('s_cbranch_scc1 L_nosh%d' % c)
    a('s_mov_b32 m0, %d' % SL[c])
    a('s_nop 0')
    for j in range(4): a('buffer_load_dwordx4 %s, %s, s79 offen offset:%d lds' % (v(32 + j), s(rU, 4), 1024 * j))
    a('s_mov_b32 m0, %d' % (SL[c] + 4096))
    a('s_nop 0')
    for j in range(3): a('buffer_load_dwordx4 %s, %s, s80 offen offset:%d lds' % (v(40 + j), s(rW1, 4), 1024 * j))
    a('s_add_u32 m0, s78, %d' % SL[c])
    a('s_nop 0')
    a('L_nosh%d:' % c)
    for f in ops[1:]: f()
a('L_r2done:')
a('v_add_u32 v36, s83, %s' % v(vDMP))
a('s_nop 7\ns_nop 3')
a('s_cmp_eq_u32 s8, 3')
a('s_cbranch_scc1 L_d3')
for i in range(8): a('v_pk_add_f32 %s, %s, %s' % (v(vA2 + 2 * i, 2), v(vA2 + 2 * i, 2), v(vA1 + 2 * i, 2)))
a('s_branch L_dj')
a('L_d3:')
a('v_add_u32 v37, %d, %s' % (L_DMX, v(vDMP)))
for i in range(4): a('ds_write_b128 v37, %s offset:%d' % (v(vA1 + 4 * i, 4), 32 * i))
a('L_dj:')
for i in range(4): a('ds_write_b128 v36, %s offset:%d' % (v(vA2 + 4 * i, 4), 32 * i))
a('s_cmp_lg_u32 s8, 0')
a('s_cbranch_scc1 L_w0w')
a('s_waitcnt vmcnt(0)')
a('L_w0w:')
a('s_waitcnt vmcnt(%d)' % (a.vm - tCHORE - 1))
CMP0 = 'v_cmp_eq_u32 vcc, 0, v30'
a(CMP0)
spin('L_sn', NL, CMP0)
a('v_readfirstlane_b32 s6, v30')
a('v_readfirstlane_b32 s7, v30')
a.wlg0()
a('s_barrier')
publish('''
s_cmp_lg_u32 s8, 3
s_cbranch_scc1 L_skfu
s_cmp_eq_u32 s91, 0
s_cbranch_scc1 L_skfu
s_lshl_b32 s4, s84, 7
s_lshl_b32 s5, s9, 2
s_add_u32 s4, s4, s5
''', 'L_skfu')
stamp('dump')
a('s_cmp_eq_u32 s8, 3')
a('s_cbranch_scc1 L_noexp')
def gather(dst, base, ad):
    for i in range(7): a('v_add_u32 %s, %s, %s' % (v(ad + i), base, v(vE + i)))
    P4 = DP // 4
    a('ds_read2_b32 %s, %s offset0:0 offset1:%d' % (v(dst, 2), v(ad), P4))
    a('ds_read2_b32 %s, %s offset0:%d offset1:%d' % (v(dst + 2, 2), v(ad), 2 * P4, 3 * P4))
    a('ds_read2_b32 %s, %s offset0:0 offset1:%d' % (v(dst + 4, 2), v(ad + 1), P4))
    a('ds_read2_b32 %s, %s offset0:0 offset1:%d' % (v(dst + 6, 2), v(ad + 3), P4))
    a('ds_read_b64 %s, %s' % (v(dst + 8, 2), v(ad + 5)))
    a('ds_read_b32 %s, %s' % (v(dst + 10), v(ad + 2)))
    a('ds_read_b32 %s, %s' % (v(dst + 11), v(ad + 4)))
    a('ds_read_b32 %s, %s' % (v(dst + 12), v(ad + 6)))
gather(112, 's83', 164)
a('''
v_cmp_eq_u32 vcc, 0, v1
s_mul_i32 s4, s8, %d
s_add_u32 s4, s4, %d
v_cndmask_b32 v36, 0, %s, vcc
v_lshlrev_b32 v37, 3, v1
v_add_u32 v37, s4, v37
v_add_u32 v38, s4, v2
v_lshlrev_b32 v39, 5, v1
v_add_u32 v39, s4, v39
v_mov_b32 v40, 0
v_mov_b32 v41, 0
''' % (KLSZ, L_KL, v(vDSK)))
a('s_cmp_eq_u32 s8, 0')
a('s_cbranch_scc1 L_exp1')
a('s_cmp_eq_u32 s8, 1')
a('s_mov_b32 s4, %d' % (3 * TABSZ))
a('s_cselect_b32 s4, %d, s4' % L_DMX)
gather(128, 's4', 172)
a('s_waitcnt lgkmcnt(0)')
for i in range(0, 12, 2): a('v_pk_add_f32 %s, %s, %s' % (v(112 + i, 2), v(112 + i, 2), v(128 + i, 2)))
a('v_add_f32 v124, v124, v140')
a('L_exp1:')
a('s_waitcnt lgkmcnt(0)')
a('v_add_f32 v112, v112, v36')
cv = lambda d, x, y: a('v_cvt_pk_bf16_f32 v%d, v%d, v%d' % (d, x, y))
cv(146, 116, 116); cv(147, 117, 122)
cv(148, 118, 118); cv(149, 118, 119); cv(150, 119, 119); cv(151, 123, 123)
cv(152, 120, 120); cv(153, 120, 120); cv(154, 120, 121); cv(155, 121, 121)
cv(156, 121, 121); cv(157, 121, 121); cv(158, 124, 124); cv(159, 124, 124)
cv(144, 112, 113); cv(145, 114, 115)
a('ds_write_b64 v37, v[40:41]')
a('ds_write_b64 v37, v[146:147] offset:1024')
a('ds_write_b128 v38, v[148:151] offset:1536')
a('ds_write_b128 v39, v[152:155] offset:2560')
a('ds_write_b128 v39, v[156:159] offset:2576')
a('ds_write_b64 v37, v[144:145] offset:512')
if args.dbgK:
    a('s_waitcnt lgkmcnt(0)')
    a('s_mul_i32 s5, s94, 4096')
    a('s_add_u32 s5, s5, %d' % WS_DBG)
    for i in range(4):
        a('ds_read_b128 v[160:163], v38 offset:%d' % (512 + 1024 * i))
        a('s_waitcnt lgkmcnt(0)')
        a('buffer_store_dwordx4 v[160:163], v2, %s, s5 offen offset:%d' % (RWS, 1024 * i))
        a('s_waitcnt vmcnt(0)')
a('L_noexp:')
stamp('exp')

vACC = 48
vF = [96, 112, 128]
vGF = 144
vUL = 160
def xbase(regA, regB, slot):
    return (regB, SL[slot] - SL[1]) if slot in (1, 2) else (regA, SL[slot])
def g1_reads(n):
    c, kk = divmod(n, 4); slot = c % 5; f = vF[n % 3]
    r, off = xbase(vXA + kk, vXB + kk, slot)
    ops = [('x', 'ds_read_b128 %s, %s offset:%d' % (v(f, 4), v(r), off))]
    wb, wo = {0: (vWB + 1, 0), 1: (vWB + 1, SLOT), 2: (vWB + 2, 0), 3: (vWB, 0), 4: (vWB, SLOT)}[slot]
    for j in range(3):
        for h in range(2):
            ops.append(('w%d' % j, 'ds_read_b64_tr_b16 %s, %s offset:%d' % (v(f + 4 + 4 * j + 2 * h, 2), v(wb), wo + kk * 7168 + h * 768 + 64 * j)))
    return ops

a.wvm(tW2C)
publish('''
s_cmp_ge_u32 s85, 384
s_cbranch_scc1 L_skfw
s_lshr_b32 s5, s85, 3          ; ks
s_mul_i32 s34, s5, 5462
s_lshr_b32 s34, s34, 16        ; ks/12
s_mul_i32 s35, s34, 12
s_sub_u32 s5, s5, s35
s_and_b32 s4, s85, 7
s_lshl_b32 s4, s4, 2
s_add_u32 s4, s4, s34
s_lshl_b32 s4, s4, 5
s_add_u32 s4, s4, s5
s_lshl_b32 s4, s4, 2
s_add_u32 s4, s4, %d
''' % WS_FW, 'L_skfw')
a('s_barrier')
a('s_lshl_b32 s4, s13, 7')
a('v_add_u32 %s, s4, %s' % (v(vGWc), v(vGW0)))
tok = {}
for n in (0, 1):
    tok[n] = {}
    for nm, ins in g1_reads(n): tok[n][nm] = a.ds(ins)

tk = {}
def w2_load(n):
    def f():
        if n % 4 == 0 and n > 0: a('s_add_u32 s87, s87, 4096')
        tk['w2'] = a.vmem('buffer_load_dwordx4 %s, v2, %s, s87 offen offset:%d sc1' % (ac(4 * n, 4), RWS, 1024 * (n % 4)))
    return f
def u_load(ch, j):
    def f():
        r = vUL + 8 * ch
        if j == 0: a.vmem('buffer_load_dwordx4 %s, v2, %s, s%d offen offset:4 sc1' % (v(r + 4, 4), RWS, 88 + ch))
        else: tk['u%d' % ch] = a.vmem('buffer_load_dword %s, v2, %s, s%d offen sc1' % (v(r + 3), RWS, 88 + ch))
    return f
def pollW():
    a('''
    s_lshl_b32 s86, s11, 2
    s_add_u32 s86, s86, s8
    s_lshl_b32 s86, s86, 7
    s_add_u32 s86, s86, %d
    s_load_dwordx8 s[32:39], s[46:47], s86
    s_load_dwordx4 s[40:43], s[46:47], s86 offset:32
    ''' % WS_FW)
def pollU():
    a('''
    s_cmp_lt_u32 s8, 2
    s_cselect_b32 s95, s14, s3
    s_lshr_b32 s95, s95, 6
    s_lshl_b32 s95, s95, 7
    s_load_dwordx16 s[16:31], s[46:47], s95
    ''')
def check_polls():
    a.wlg0()
    scheck('L_sw', [32, 34, 36, 38, 40, 42], 'v_min_u32 v28, 11, v1\nv_lshlrev_b32 v28, 2, v28', 's86')
    scheck('L_su', list(range(16, 32, 2)), 'v_and_b32 v28, 15, v1\nv_lshlrev_b32 v28, 2, v28', 's95')
def after_polls():
    a('''
    s_lshl_b32 s4, s8, 10
    s_add_u32 s4, s4, %d
    s_mul_i32 s88, s14, %d
    s_add_u32 s88, s88, s4
    s_mul_i32 s89, s15, %d
    s_add_u32 s89, s89, s4
    s_mul_i32 s90, s3, %d
    s_add_u32 s90, s90, s4
    s_mul_i32 s87, s11, 48
    s_mul_i32 s4, s8, 12
    s_add_u32 s87, s87, s4
    s_mul_i32 s87, s87, 5120
    s_add_u32 s87, s87, %d
    s_mul_i32 s4, s99, %d
    s_add_u32 s4, s4, s87
    v_min_u32 v33, 59, v1
    v_lshlrev_b32 v33, 7, v33
    ''' % (WS_UT + 128 - 4, UT_PITCH, UT_PITCH, UT_PITCH, WS_W2P, 60 * 128))
    a.vmem('buffer_load_dword v34, v33, %s, s4 offen sc1' % RWS)
def ustage_setup():
    a('''
    v_lshlrev_b32 v37, 4, v0
    v_add_u32 v37, %d, v37
    v_cmp_eq_u32 vcc, 0, v0
    v_mul_u32_u24 v40, 13108, v1
    v_lshrrev_b32 v40, 16, v40
    v_cndmask_b32 v38, -1, v3, vcc
    v_mul_u32_u24 v41, 5, v40
    v_sub_u32 v41, v1, v41
    v_mul_u32_u24 v40, %d, v40
    v_lshl_add_u32 v40, v41, 3, v40
    v_mov_b32 v42, 0
    v_mov_b32 v43, 0
    ''' % (L_U + 32, UC))
def ustage_pad():
    a('s_cmp_lg_u32 s8, 0')
    a('s_cbranch_scc1 L_nopad')
    a('s_mov_b32 exec_hi, 0x0fffffff')
    a('ds_write_b64 v40, v[42:43] offset:%d' % L_U)
    a('s_mov_b32 exec_hi, -1')
    a('L_nopad:')
def ustage(ch):
    r = vUL + 8 * ch; o = vUL + 24 + 4 * ch
    def f0():
        a.wvm(tk['u%d' % ch])
        a('v_and_b32 %s, v38, %s' % (v(r + 3), v(r + 3)))
        a.ds('ds_write_b128 v37, %s offset:%d' % (v(r + 4, 4), ch * UCH))
        a('v_add_u32 v39, %d, v37' % (ch * UCH + 2 * UC + 4))
    def f1():
        for k in range(4): a('v_alignbit_b32 %s, %s, %s, 16' % (v(o + k), v(r + 4 + k), v(r + 3 + k)))
    def f2():
        a.ds('ds_write2_b32 v39, %s, %s offset0:0 offset1:1' % (v(r + 4), v(r + 5)))
        a.ds('ds_write2_b32 v39, %s, %s offset0:2 offset1:3' % (v(r + 6), v(r + 7)))
        a('v_add_u32 v41, %d, v39' % UC)
    def f3():
        a.ds('ds_write_b128 v37, %s offset:%d' % (v(o, 4), ch * UCH + UC))
    def f4():
        a.ds('ds_write2_b32 v41, %s, %s offset0:0 offset1:1' % (v(o), v(o + 1)))
        a.ds('ds_write2_b32 v41, %s, %s offset0:2 offset1:3' % (v(o + 2), v(o + 3)))
    return [f0, f1, f2, f3, f4]
w2q = [w2_load(n) for n in range(60)]
side = dma_ops(3) + dma_ops(4)
side2 = []
gt = {}
for n in range(40):
    c, kk = divmod(n, 4); slot = c % 5; f = vF[n % 3]
    if kk == 2 and c + 1 < 10:
        b = c + 1
        while b not in tCH: side.pop(0)()
        if b == args.chkb: check_polls()
        a.wvm(tCH[b])
        a('s_barrier')
        stamp('B%d' % b, 'g1')
        if 2 <= b and b + 3 < 10: side += dma_ops(b + 3)
        if b == args.pollb: side2 += [pollW]
        if b == args.pollb + 1: side2 += [pollU]
        if b == args.chkb:
            side += [after_polls] + [u_load(ch, j) for ch in range(3) for j in range(2)] + [w2q.pop(0) for _ in range(args.w2tail)]
            side2 += [ustage_setup]
        if b == 8: side2 += [ustage_pad]
    rd = g1_reads(n + 2) if n + 2 < 40 else []
    tok[n + 2] = {}
    grd = []
    if kk < 2:
        r, off = xbase(vGXA + kk, vGXB + kk, slot)
        grd = [('gx', 'ds_read_b128 %s, %s offset:%d' % (v(vGF + 8 * kk, 4), v(r), off)),
               ('g%d' % kk, 'ds_read_b128 %s, %s offset:%d' % (v(vGF + 8 * kk + 4, 4), v(vGWc), 64 * kk))]
    allrd = [(tok[n + 2], x) for x in rd] + [(gt, x) for x in grd]
    per = [[], [], []]
    for i, r in enumerate(allrd): per[min(2, i * 3 // max(len(allrd), 1))].append(r)
    for j in range(3):
        a.wlg(max(tok[n]['x'], tok[n]['w%d' % j]))
        cin = '0' if n == 0 else v(vACC + 16 * j, 16)
        if 'nomfma' not in X: a('v_mfma_f32_32x32x16_bf16 %s, %s, %s, %s' % (v(vACC + 16 * j, 16), v(f + 4 + 4 * j, 4), v(f, 4), cin))
        for d, (nm, ins) in per[j]:
            if 'noread' in X or ('nogate' in X and nm[0] == 'g') or ('nowread' in X and nm[0] == 'w'): d[nm] = 0
            else: d[nm] = a.ds(ins)
        if side and (j != 1 or len(side) > 8): side.pop(0)()
        if side2 and j != 0: side2.pop(0)()
    if kk == 1:
        a('s_add_u32 s13, s13, 1')
        a('s_cmp_ge_u32 s13, 10')
        a('s_cselect_b32 s13, 0, s13')
        a('s_lshl_b32 s4, s13, 7')
        a('v_add_u32 %s, s4, %s' % (v(vGWc), v(vGW0)))
    if kk >= 2:
        g = kk - 2
        a.wlg(gt['g%d' % g])
        a('v_mfma_f32_16x16x32_bf16 %s, %s, %s, %s' % (v(vGACC, 4), v(vGF + 8 * g + 4, 4), v(vGF + 8 * g, 4), v(vGACC, 4)))
while side: side.pop(0)()
while side2: side2.pop(0)()
stamp('g1')

a('''
v_bfe_u32 v36, v1, 4, 1
v_mul_u32_u24 v36, %d, v36
v_lshrrev_b32 v35, 5, v1
v_lshl_add_u32 v36, v35, 8, v36
v_and_b32 v35, 15, v1
v_lshl_add_u32 v36, v35, 4, v36
s_lshl_b32 s4, s9, 3
s_lshl_b32 s5, s8, 1
s_add_u32 s4, s4, s5
s_mul_i32 s4, s4, 48
s_mul_i32 s5, s10, 3
s_add_u32 s4, s4, s5
s_lshl_b32 s79, s4, 10
s_add_u32 s79, s79, %d
s_mov_b32 s72, 0xbfb8aa3b
s_mov_b32 s73, 0xbfb8aa3b
''' % (48 * 1024, WS_HP))
nsil = args.w2silu
for g in range(6):
    j, p = g // 2, g % 2
    x = vACC + 16 * j + 8 * p
    e = 96 + 8 * (g & 1); o = 112 + 4 * (g & 3)
    for i in range(4): a('v_pk_mul_f32 %s, %s, s[72:73]' % (v(e + 2 * i, 2), v(x + 2 * i, 2)))
    nl = nsil * (g + 1) // 6 - nsil * g // 6
    for i in range(8):
        a('v_exp_f32 %s, %s' % (v(e + i), v(e + i)))
        if i in (1, 6) and nl > (1 if i == 1 else 2): w2q.pop(0)()
    for i in range(4): a('v_pk_add_f32 %s, %s, 1.0 op_sel_hi:[1,0]' % (v(e + 2 * i, 2), v(e + 2 * i, 2)))
    for i in range(8):
        a('v_rcp_f32 %s, %s' % (v(e + i), v(e + i)))
        if i == 3:
            for _ in range(max(nl - 2, 1) if nl else 0): w2q.pop(0)()
    for i in range(4): a('v_pk_mul_f32 %s, %s, %s' % (v(e + 2 * i, 2), v(e + 2 * i, 2), v(x + 2 * i, 2)))
    for i in range(4): a('v_cvt_pk_bf16_f32 %s, %s, %s' % (v(o + i), v(e + 2 * i), v(e + 2 * i + 1)))
    tH = a.vmem('buffer_store_dwordx4 %s, v36, %s, s79 offen offset:%d sc1' % (v(o, 4), RWS, 1024 * j + 512 * p))
for ch in range(3):
    for f in ustage(ch): f()
a('''
v_bfe_u32 v40, v1, 2, 2
v_mul_u32_u24 v40, %d, v40
v_and_b32 v41, 3, v1
v_lshl_add_u32 v40, v41, 3, v40
v_lshrrev_b32 v41, 4, v1
v_lshlrev_b32 v42, 4, v41
v_sub_u32 v40, v40, v42
v_add_u32 v32, %d, v40
v_and_b32 v40, 15, v1
v_lshl_add_u32 v40, v40, 5, v42
v_add_u32 v33, %d, v40
''' % (UC, L_U + 56, L_KL + 32))
a.wlg0()
a('s_barrier')
stamp('silu')

def pub_h():
    a.wvm(tH)
    publish('''
    s_lshl_b32 s4, s9, 1
    s_lshr_b32 s5, s8, 1
    s_add_u32 s4, s4, s5
    s_lshl_b32 s4, s4, 2
    s_lshr_b32 s5, s10, 2
    s_add_u32 s4, s4, s5
    s_lshl_b32 s4, s4, 4
    s_and_b32 s5, s10, 3
    s_add_u32 s4, s4, s5
    s_lshl_b32 s4, s4, 1
    s_and_b32 s5, s8, 1
    s_add_u32 s4, s4, s5
    s_lshl_b32 s4, s4, 2
    s_add_u32 s4, s4, %d
    ''' % WS_FH)
def poll_h():
    a('''
    s_lshl_b32 s86, s9, 1
    s_add_u32 s86, s86, s12
    s_lshl_b32 s86, s86, 2
    s_add_u32 s86, s86, s8
    s_lshl_b32 s86, s86, 7
    s_add_u32 s86, s86, %d
    s_load_dwordx8 s[16:23], s[46:47], s86
    ''' % WS_FH)
def h_addrs():
    a('''
    s_lshl_b32 s4, s9, 3
    s_lshl_b32 s5, s12, 2
    s_add_u32 s4, s4, s5
    s_mul_i32 s4, s4, 48
    s_mul_i32 s5, s8, 12
    s_add_u32 s4, s4, s5
    s_lshl_b32 s4, s4, 10
    s_add_u32 s4, s4, %d
    ''' % WS_HP)
    for n in range(4):
        a('s_add_u32 s5, s76, %d' % (n + 1))
        a('s_and_b32 s5, s5, 3')
        a('s_mul_i32 s5, s5, %d' % (48 * 1024))
        a('s_add_u32 s%d, s4, s5' % (94 + n))
def hreg(n, k):
    if n == 0: return 176 + 4 * k
    if n == 1: return 48 + 4 * k
    if n == 2: return 96 + 4 * k
    return 144 + 4 * k if k < 8 else 224 + 4 * (k - 8)
tHL = {}
def h_load(n, k):
    def f():
        if k in (4, 8): a('s_add_u32 s%d, s%d, 4096' % (94 + n, 94 + n))
        tHL[(n, k)] = a.vmem('buffer_load_dwordx4 %s, v2, %s, s%d offen offset:%d sc1' % (v(hreg(n, k), 4), RWS, 94 + n, 1024 * (k % 4)))
    return f
def conv_pair(accA, accB, gA, sreg, tmp):
    a('v_cvt_pk_bf16_f32 %s, %s, %s' % (v(tmp), v(accA), v(accA + 1)))
    a('v_cvt_pk_bf16_f32 %s, %s, %s' % (v(tmp + 1), v(accA + 2), v(accA + 3)))
    a('v_cvt_pk_bf16_f32 %s, %s, %s' % (v(tmp + 2), v(accB), v(accB + 1)))
    a('v_cvt_pk_bf16_f32 %s, %s, %s' % (v(tmp + 3), v(accB + 2), v(accB + 3)))
    a('s_nop 1')
    a('v_permlane16_swap_b32 %s, %s' % (v(tmp), v(tmp + 2)))
    a('v_permlane16_swap_b32 %s, %s' % (v(tmp + 1), v(tmp + 3)))
    return a.vmem('buffer_store_dwordx4 %s, v36, %s, s%d offen offset:%d sc1' % (v(tmp, 4), RWS, sreg, 512 * gA))
def conv_single(accA, gA, sreg, tmp):
    a('v_cvt_pk_bf16_f32 %s, %s, %s' % (v(tmp), v(accA), v(accA + 1)))
    a('v_cvt_pk_bf16_f32 %s, %s, %s' % (v(tmp + 1), v(accA + 2), v(accA + 3)))
    return a.vmem('buffer_store_dwordx2 %s, v37, %s, s%d offen offset:%d sc1' % (v(tmp, 2), RWS, sreg, 512 * gA))
def split(code):
    return [(lambda l=l: a(l)) for l in code.split('\n') if l.strip()]
STORE_ADDRS = '''
v_and_b32 v38, 15, v1
v_lshlrev_b32 v38, 5, v38
v_lshrrev_b32 v39, 5, v1
v_lshl_add_u32 v36, v39, 4, v38
v_bfe_u32 v39, v1, 4, 1
v_lshl_add_u32 v36, v39, 9, v36
v_lshrrev_b32 v39, 4, v1
v_lshl_add_u32 v37, v39, 3, v38
s_lshl_b32 s88, s14, 12
s_add_u32 s88, s88, %d
s_lshl_b32 s89, s15, 12
s_add_u32 s89, s89, %d
s_lshl_b32 s90, s3, 12
s_add_u32 s90, s90, %d
s_lshl_b32 s80, s2, 12
s_add_u32 s80, s80, 0x%x
''' % (WS_AT, WS_AT, WS_AT, WS_JUNK)

def conv_body(stages, nbuf, bufsz, vBUF, sidework):
    def issue(i, r): return a.ds(r[1](vBUF + (i % nbuf) * bufsz + r[2]))
    toks = [dict() for _ in stages]
    ahead = nbuf - 1
    for i in range(ahead):
        for r in stages[i][0]: toks[i][r[0]] = issue(i, r)
    gi = 0
    for i, (rd, mf) in enumerate(stages):
        nxt = list(stages[i + ahead][0]) if i + ahead < len(stages) else []
        base = vBUF + (i % nbuf) * bufsz
        nm = len(mf); done = 0
        for k, (acc, kA, rA, kB, rB, first) in enumerate(mf):
            a.wlg(max(toks[i][kA], toks[i][kB]))
            a('v_mfma_f32_16x16x32_bf16 %s, %s, %s, %s' % (v(acc, 4), v(base + rA, 4), v(base + rB, 4), '0' if first else v(acc, 4)))
            want = min(len(nxt), -(-len(nxt) * (k + 1) // nm))
            while done < want:
                toks[i + ahead][nxt[done][0]] = issue(i + ahead, nxt[done]); done += 1
            for f in sidework.get(gi, []): f()
            gi += 1

NH0 = args.nh0
def make_side(tag):
    sw = {}
    pos = 1
    for f in w2q:
        sw.setdefault(pos, []).append(f); pos += args.w2step
    assert pos <= args.chkh + args.w2step, pos
    sw.setdefault(args.pubh, []).append(pub_h)
    for i, f in enumerate(split(STORE_ADDRS)): sw.setdefault(20 + 4 * i + 2, []).append(f)
    sw.setdefault(120, []).append(h_addrs)
    sw.setdefault(args.pollh, []).append(poll_h)
    def chk():
        a.wlg0()
        scheck('L_sh' + tag, [16, 18, 20, 22], 'v_and_b32 v28, 7, v1\nv_lshlrev_b32 v28, 2, v28', 's86')
    sw.setdefault(args.chkh, []).append(chk)
    for i in range(NH0): sw.setdefault(min(215, args.chkh + args.hstep * i), []).append(h_load(0, i))
    if 'cv' in args.fine.split(','):
        for p in (54, 108, 162): sw.setdefault(p, []).append(lambda p=p: stamp('cv%d' % p))
    return sw

def build_stage(Gs, accmap, lorder, goff, xoff, xrel, first_stage):
    rd = []; mf = []
    rem = [(i, g - i, g) for g in Gs for i in range(g + 1)]
    order = []; sG = []; sX = []
    for kind, idx in lorder:
        if kind == 'G':
            for h in range(2):
                rd.append(('G%d%s' % (idx, 'a' if h == 0 else ''), (lambda r, o=goff + 512 * idx + (8 if h == 0 else 0): 'ds_read_b64_tr_b16 %s, v32 offset:%d' % (v(r, 2), o)), 4 * idx + 2 * h))
            sG.append(idx)
        else:
            rd.append(('X%d' % idx, (lambda r, o=xoff + 512 * idx: 'ds_read_b128 %s, v33 offset:%d' % (v(r, 4), o)), xrel + 4 * idx))
            sX.append(idx)
        for pr in list(rem):
            if pr[0] in sG and pr[1] in sX: order.append(pr); rem.remove(pr)
    assert not rem
    seen = set()
    for (i, ip, g) in order:
        mf.append((accmap[g], 'G%d' % i, 4 * i, 'X%d' % ip, xrel + 4 * ip, first_stage and g not in seen)); seen.add(g)
    return rd, mf

st0 = a.save(); sn0 = list(stamp_names)
a('s_cmp_eq_u32 s8, 3')
a('s_cbranch_scc1 L_conv3')
a('s_mul_i32 s4, s8, %d' % UCH)
a('v_add_u32 v32, s4, v32')
a('s_mul_i32 s4, s8, %d' % KLSZ)
a('v_add_u32 v33, s4, v33')
Gs = [0, 4, 5, 6, 7]
LO = [('G', 0), ('X', 0), ('X', 4), ('G', 4), ('G', 1), ('X', 3), ('G', 2), ('X', 2), ('G', 3), ('X', 1), ('X', 5), ('G', 5), ('X', 6), ('G', 6), ('X', 7), ('G', 7)]
stages = [build_stage(Gs, {g: 4 + 4 * i for i, g in enumerate(Gs)}, LO, 64 * mp, 64 * (7 - mp), 32, mp == 0) for mp in range(8)]
conv_body(stages, 2, 64, 48, make_side('m'))
for k in range(args.nh1): h_load(1, k)()
a('s_cmp_eq_u32 s77, 0')
a('s_cselect_b32 s90, s80, s90')
a('s_cmp_eq_u32 s8, 1')
a('s_cselect_b32 s88, s89, s88')
a('s_cmp_eq_u32 s8, 2')
a('s_cselect_b32 s88, s90, s88')
a('s_nop 2')
conv_single(4, 0, 88, 38)
conv_pair(8, 12, 4, 88, 40)
conv_pair(16, 20, 6, 88, 44)
st_main = a.save(); tk_main = dict(tk); tHL_main = dict(tHL); sn_main = list(stamp_names)
a('s_branch L_convdone')
a('L_conv3:')
a.restore(st0); stamp_names[:] = sn0
acc3 = [4, 8, 12, 16, 20, 144, 148, 152, 156]
LO3 = [('G', 0), ('X', 1), ('G', 1), ('X', 0), ('X', 2), ('G', 2), ('X', 3), ('G', 3)]
stages = [build_stage((1, 2, 3), {g: acc3[3 * ch + g - 1] for g in (1, 2, 3)}, LO3, ch * UCH + 64 * mp, ch * KLSZ + 64 * (7 - mp), 16, mp == 0)
          for mp in range(8) for ch in range(3)]
conv_body(stages, 3, 32, 48, make_side('w'))
for k in range(args.nh1): h_load(1, k)()
a('s_cmp_eq_u32 s77, 0')
a('s_cselect_b32 s90, s80, s90')
a('s_nop 5')
for ch in range(3):
    conv_single(acc3[3 * ch], 1, 88 + ch, 40 + 2 * ch)
    conv_pair(acc3[3 * ch + 1], acc3[3 * ch + 2], 2, 88 + ch, 160 + 4 * ch)
a('L_convdone:')
a.restore(st_main); tk = tk_main; tHL.clear(); tHL.update(tHL_main); stamp_names[:] = sn_main
tA = a.vm
a.lg_done = a.lg
stamp('conv')

assert NH0 == 12
hq = [h_load(n, k) for n in range(4) for k in range(12)][NH0 + args.nh1:]
accs = [[4, 8, 12, 16, 20], [40, 44, 240, 244, 248]]
for n in range(3):
    a('s_add_u32 s4, s8, %d' % (n + 1))
    a('s_and_b32 s4, s4, 3')
    a('s_mul_i32 s4, s4, %d' % (3 * 5120))
    if n: a('s_add_u32 s4, s4, %d' % (L_RED + n * 5120))
    a('v_add_u32 v%d, s4, v2' % (32 + n))
a('s_mul_i32 s4, s8, %d' % (3 * 5120))
a('v_add_u32 v35, s4, v2')
def pub_a():
    a.wvm(tA)
    a('s_barrier')
    publish('''
    s_cmp_lg_u32 s8, 0
    s_cbranch_scc1 L_skfa
    s_lshr_b32 s4, s92, 3
    s_lshl_b32 s4, s4, 5
    s_and_b32 s5, s92, 7
    s_add_u32 s4, s4, s5
    s_lshl_b32 s4, s4, 2
    s_add_u32 s4, s4, %d
    ''' % WS_FA, 'L_skfa')
def poll_a():
    a('s_lshl_b32 s86, s11, 9')
    a('s_add_u32 s86, s86, %d' % WS_FA)
    for i, r in enumerate((16, 24, 32, 48)):
        a('s_load_dwordx8 %s, s[46:47], s86 offset:%d' % (s(r, 8), 128 * i))
vA = 176
ta = []
def a_addr():
    a('''
    v_lshrrev_b32 v36, 4, v1
    v_mul_u32_u24 v37, %d, v36
    v_and_b32 v38, 15, v1
    v_lshl_add_u32 v37, v38, 1, v37
    s_lshl_b32 s4, s9, 7
    s_lshl_b32 s5, s12, 6
    s_add_u32 s4, s4, s5
    s_lshl_b32 s5, s76, 4
    s_add_u32 s79, s4, s5
    s_mul_i32 s80, s11, %d
    s_lshl_b32 s5, s79, 1
    s_add_u32 s80, s80, s5
    s_add_u32 s80, s80, %d
    v_mul_u32_u24 v38, 1280, v38
    v_mul_u32_u24 v36, 40, v36
    v_add_u32 v38, v38, v36
    s_mul_i32 s79, s79, 1280
    s_mul_i32 s5, s11, 160
    s_add_u32 s79, s79, s5
    v_mul_f32 v24, s72, v24
    v_exp_f32 v24, v24
    s_nop 0
    v_add_f32 v24, 1.0, v24
    v_rcp_f32 v24, v24
    ''' % (20 * AT_PITCH, 80 * AT_PITCH, WS_AT))
def chk_a():
    a.wlg0()
    scheck('L_sa', list(range(16, 40, 2)) + [48, 50, 52, 54], 'v_bfe_u32 v28, v1, 3, 2\nv_and_b32 v29, 7, v1\nv_lshlrev_b32 v28, 7, v28\nv_lshl_add_u32 v28, v29, 2, v28', 's86')
def a_load(j):
    def f():
        ta.append(a.vmem('buffer_load_short_d16_hi %s, v37, %s, s80 offen sc1' % (v(vA + j), RWS)))
        if j < 19: a('s_add_u32 s80, s80, %d' % AT_PITCH)
    return f
aq = []
a.wvm(tk['w2'])
redq = []
for n in range(4):
    acc = accs[n & 1]
    for k in range(12):
        a.wvm(tHL[(n, k)])
        for i in range(5):
            a('v_mfma_f32_16x16x32_bf16 %s, %s, %s, %s' % (v(acc[i], 4), ac(4 * (5 * k + i), 4), v(hreg(n, k), 4), '0' if k == 0 else v(acc[i], 4)))
            if i == 1 and hq: hq.pop(0)()
            if i == 3 and redq and k >= 2: redq.pop(0)()
            if aq: aq.pop(0)()
        gk = 12 * n + k
        if gk == args.puba: pub_a()
        if gk == args.puba + 2: a_addr()
        if gk == args.polla: poll_a()
        if gk == args.chka:
            chk_a(); aq += [a_load(j) for j in range(20)]
    if n < 3:
        for i in range(5):
            def f(i=i, n=n, acc=acc): a.ds('ds_write_b128 v%d, %s offset:%d' % (32 + n, v(acc[i], 4), 1024 * i))
            redq.append(f)
    stamp('g2_%d' % n, 'g2' if n < 3 else None)
assert not redq and not hq
while aq: aq.pop(0)()
a.wlg0()
a('s_barrier')
vR = 60
rt = []
for n in range(3):
    for i in range(5):
        rt.append(a.ds('ds_read_b128 %s, v35 offset:%d' % (v(vR + 20 * n + 4 * i, 4), n * 5120 + 1024 * i)))
acc = accs[1]
for n in range(3):
    for i in range(5):
        a.wlg(rt[5 * n + i])
        for h in range(2):
            r = acc[i] + 2 * h
            a('v_pk_add_f32 %s, %s, %s' % (v(r, 2), v(r, 2), v(vR + 20 * n + 4 * i + 2 * h, 2)))
stamp('red')
vO = 128
for j in range(0, 20, 2):
    r = acc[j // 4] + (j % 4)
    a.wvm(ta[j + 1])
    a('v_pk_add_f32 %s, %s, %s neg_lo:[0,1] neg_hi:[0,1]' % (v(vA + j, 2), v(vA + j, 2), v(r, 2)))
    a('v_pk_fma_f32 %s, %s, v[24:25], %s op_sel_hi:[1,0,1]' % (v(vA + j, 2), v(vA + j, 2), v(r, 2)))
    a('v_cvt_pk_bf16_f32 %s, %s, %s' % (v(vO + j // 2), v(vA + j), v(vA + j + 1)))
    if j == 6: a.vmem('buffer_store_dwordx4 %s, v38, %s, s79 offen %s' % (v(vO, 4), s(rOUT, 4), args.outfl))
    if j == 14: a.vmem('buffer_store_dwordx4 %s, v38, %s, s79 offen offset:16 %s' % (v(vO + 4, 4), s(rOUT, 4), args.outfl))
a.vmem('buffer_store_dwordx2 %s, v38, %s, s79 offen offset:32 %s' % (v(vO + 8, 2), s(rOUT, 4), args.outfl))
if args.stamps:
    stamp('fin')
    a.wvm0()
    stamp('drain')
    a('''
    s_lshl_b32 s4, s2, 2
    s_add_u32 s4, s4, s8
    s_lshl_b32 s4, s4, 8
    s_add_u32 s4, s4, %d
    v_lshlrev_b32 v32, 3, v1
    s_mov_b64 exec, 0xffffffff
    buffer_store_dwordx2 v[254:255], v32, %s, s4 offen
    ''' % (WS_ST, RWS))
if args.probe:
    stamp('end')
    a('''
    s_waitcnt vmcnt(0) lgkmcnt(0)
    s_sub_u32 s99, s100, s6
    s_lshl_b32 s99, s99, 2
    s_add_u32 s99, s99, 3000
    L_prw:
    s_sleep 4
    s_memrealtime s[100:101]
    s_waitcnt lgkmcnt(0)
    s_sub_u32 s100, s100, s6
    s_cmp_lt_i32 s100, s99
    s_cbranch_scc1 L_prw
    ''')
if args.pad:
    a('''
    s_waitcnt vmcnt(0)
    L_padw:
    s_sleep 4
    s_memrealtime s[100:101]
    s_waitcnt lgkmcnt(0)
    s_sub_u32 s100, s100, s6
    s_cmp_lt_u32 s100, %d
    s_cbranch_scc1 L_padw
    ''' % (args.pad * 100))
if args.dbgt:
    a('''
    s_cmp_lg_u32 s8, 0
    s_cbranch_scc1 L_end
    v_subrev_u32 v254, s6, v254
    v_lshlrev_b32 v32, 2, v1
    v_add_u32 v32, 8, v32
    s_mov_b64 exec, 0x3fff
    global_atomic_smax v32, v254, s[44:45] sc1
    ''')
a('L_end:')
a('s_endpgm')
for label, vcode, soff in cold:
    a('%s_slow:' % label)
    a(vcode)
    a('s_mov_b32 s82, 0x40000')
    a('%s_lp:' % label)
    a('buffer_load_dword v29, v28, %s, %s offen sc1' % (RWS, soff))
    a('s_waitcnt vmcnt(0)')
    a('v_cmp_ne_u32 vcc, s6, v29')
    a('s_cbranch_vccz %s_ok' % label)
    a('s_sleep %d' % args.sleep)
    a('s_sub_u32 s82, s82, 1')
    a('s_cmp_lg_u32 s82, 0')
    a('s_cbranch_scc1 %s_lp' % label)
    a('s_branch %s_ok' % label)
a('L_codeend:')
kernel_desc(a, KN, vgpr=512, sgpr=102, accum=256)
LL = ['; @launch grid=(256,1,1) block=(256,1,1) lds=%d' % LDS_SIZE]
wrap = lambda lines: file_text(LL, '\n'.join(lines) + '\n')
lines, size, npro, npad = align(a.lines, wrap)
assert size <= 32 * 9 * 128, size
open(args.o, 'w').write(wrap(lines))
print('code bytes', size, 'promoted', npro, 'padded', npad, 'stamps:', ' '.join(stamp_names))
```

```python
import sys, argparse
sys.path.insert(0, 'exp')
from asmlib import *
from align import align

ap = argparse.ArgumentParser()
ap.add_argument('-o', default='k.s')
ap.add_argument('--stamps', action='store_true')
ap.add_argument('--fine', default='')
ap.add_argument('--dbgK', action='store_true')
ap.add_argument('--probe', default='')
ap.add_argument('--x', default='')
for nm, d in dict(pubb=2, pollb=4, chkb=6, w2tail=11, w2silu=18, w2step=5, pubh=60, pollh=120, chkh=155, hstep=5, redk=40,
                  puba=12, polla=24, chka=29, sleep=8, pbar=1, w2pos=0).items():
    ap.add_argument('--' + nm, type=int, default=d)
ap.add_argument('--outfl', default='')
args = ap.parse_args()
X = set(args.x.split(','))

WS_FU = 0x00000
WS_FW = 0x01000
WS_FH = 0x04000
WS_FA = 0x0a000
WS_PRIV = 0x3400000
WS_UT = 0x100000; UT_PITCH = 4224
WS_AT = 0x500000; AT_PITCH = 4096
WS_W2P = 0x800000
WS_HP = 0x1000000
WS_ST = 0x2000000
WS_DBG = 0x2100000
WS_JUNK = 0x3000000
WS_SIZE = 0x4000000

TP = 272
TABSZ = 53 * TP
SLOT = 28672
L_RING = 2 * SLOT
SL = [L_RING, L_RING + SLOT, L_RING + 2 * SLOT, 0, SLOT]
L_KL = 5 * SLOT
KLSZ = 4608
L_GW = L_KL + 3 * KLSZ
L_NON = L_GW + 2048
L_W2S = 3 * TABSZ
DP = 144
LDS_SIZE = 163840
assert L_W2S + 8192 <= L_RING and L_NON + 16 <= LDS_SIZE
L_RED = 0
L_U = 61440
UC = 4160
UCH = 4 * UC
assert L_U + UCH <= SL[1] and L_U + 3 * UCH <= SL[2]


class G(Asm):
    def __init__(self):
        super().__init__()
        self.vm = 0; self.lg = 0; self.vm_done = 0; self.lg_done = 0
    def vmem(self, s_):
        self(s_); self.vm += 1; return self.vm
    def ds(self, s_):
        self(s_); self.lg += 1; return self.lg
    def wvm(self, tok):
        if tok <= self.vm_done: return
        n = min(self.vm - tok, 63)
        assert n >= 0
        self('s_waitcnt vmcnt(%d)' % n); self.vm_done = self.vm - n
    def wlg(self, tok):
        if tok <= self.lg_done: return
        n = min(self.lg - tok, 15)
        self('s_waitcnt lgkmcnt(%d)' % n); self.lg_done = self.lg - n
    def wlg0(self):
        self('s_waitcnt lgkmcnt(0)'); self.lg_done = self.lg
    def wvm0(self):
        self('s_waitcnt vmcnt(0)'); self.vm_done = self.vm
    def save(self): return (self.vm, self.lg, self.vm_done, self.lg_done)
    def restore(self, st): self.vm, self.lg, self.vm_done, self.lg_done = st

def v(i, n=1): return 'v%d' % i if n == 1 else 'v[%d:%d]' % (i, i + n - 1)
def ac(i, n=1): return 'a%d' % i if n == 1 else 'a[%d:%d]' % (i, i + n - 1)
def s(i, n=1): return 's%d' % i if n == 1 else 's[%d:%d]' % (i, i + n - 1)

a = G()
KN = NAME + '_kernel'
kernel_begin(a, KN)

pU, pAre, pAim, pBre, pBim, pCre, pCim, pLdt = 16, 18, 20, 22, 24, 26, 28, 30
pDsk, pX, pW1, pW2, pGW, pOut, pDbg, pWs = 32, 34, 36, 38, 40, 42, 44, 46
rU, rW1, rW2, rWS, rOUT, rGW = 48, 52, 56, 60, 64, 68
RWS = s(rWS, 4)
stamp_names = []
def stamp(name, fine=None):
    if args.probe == name: a('s_memrealtime s[100:101]')
    if not args.stamps: return
    if fine and fine not in args.fine.split(','): return
    i = len(stamp_names); stamp_names.append(name)
    assert i < 32
    a('s_memrealtime s[100:101]')
    a('s_memtime s[0:1]')
    a('s_waitcnt lgkmcnt(0)'); a.lg_done = a.lg
    a('v_writelane_b32 v254, s100, %d' % i)
    a('v_writelane_b32 v255, s0, %d' % i)
def split(code):
    return [(lambda l=l: a(l)) for l in code.split('\n') if l.strip()]

vDX, vDW, vGW0, vXA, vXB, vWB, vGWc, vGACC = 4, 8, 11, 12, 16, 20, 23, 24
vNON, vFLG = 30, 31
vCG, vCX, vAP, vAS, vRW, vRR = 32, 33, 34, 35, 36, 39
vGXA, vGXB, vTL, vTG, vWL, vWG, vUS, vUM, vUP, vHS, vFH = 212, 214, 216, 220, 221, 223, 225, 226, 227, 228, 229
vT = 232

a('s_cmp_ge_u32 s2, 256')
a('s_cbranch_scc1 L_end')
a('s_load_dwordx16 s[16:31], s[0:1], 0')
a('s_load_dwordx16 s[32:47], s[0:1], 64')
a('s_memrealtime s[6:7]')
a('s_getpc_b64 s[4:5]')
a('L_pc:')
a('''
s_lshr_b32 s86, s2, 3          ; i
s_mul_i32 s87, s86, 9
v_min_u32 v40, 8, v0
v_add_u32 v40, s87, v40
v_lshlrev_b32 v40, 7, v40
v_min_u32 v40, L_codeend-L_pc-4, v40
global_load_dword v253, v40, s[4:5]
''')
if args.stamps:
    a('v_mov_b32 v254, 0\nv_mov_b32 v255, 0')
a('''
v_and_b32 v1, 63, v0
v_lshrrev_b32 v41, 6, v0
v_lshlrev_b32 v2, 4, v1
v_readfirstlane_b32 s8, v41
s_and_b32 s4, s2, 7            ; xcd
s_lshr_b32 s92, s2, 4
s_lshl_b32 s92, s92, 3
s_add_u32 s92, s92, s4         ; cw
s_and_b32 s93, s86, 1          ; small ?
s_xor_b32 s77, s93, 1          ; big
s_mul_i32 s14, s92, 5
s_mul_i32 s94, s93, 3
s_add_u32 s14, s14, s94        ; c0
s_add_u32 s15, s14, 1          ; c1
s_add_u32 s3, s15, s77         ; c2 (= c1 for small)
s_add_u32 s94, s14, s8
s_min_u32 s94, s94, s3         ; channel of waves 0..2
s_mul_i32 s95, s94, 384
v_lshlrev_b32 v63, 2, v1
v_add_u32 v63, s95, v63
v_lshlrev_b32 v65, 1, v1
v_add_u32 v65, s95, v65
s_lshl_b32 s95, s94, 1
v_mov_b32 v64, s95
v_mov_b32 v3, 0
s_lshr_b32 s9, s4, 1
s_lshl_b32 s9, s9, 2
s_lshr_b32 s96, s86, 3         ; rl
s_add_u32 s9, s9, s96          ; rb
s_and_b32 s87, s4, 1           ; xcd parity
s_and_b32 s88, s86, 7          ; cl
s_lshl_b32 s10, s87, 3
s_add_u32 s10, s10, s88        ; cb
s_mul_i32 s13, s88, 5
s_lshr_b32 s13, s13, 2
s_mul_i32 s90, s96, 10
s_lshr_b32 s90, s90, 2
s_add_u32 s90, s90, s87
s_add_u32 s13, s13, s90
s_cmp_ge_u32 s13, 10
s_cselect_b32 s89, 10, 0
s_sub_u32 s13, s13, s89        ; start chunk
s_mov_b32 s81, s13
s_mul_i32 s78, s8, 7168
v_lshrrev_b32 v40, 3, v1
s_lshl_b32 s4, s9, 7
v_add_u32 v40, s4, v40
v_mul_u32_u24 v40, 1280, v40
v_and_b32 v41, 7, v1
v_lshrrev_b32 v42, 4, v1
v_xor_b32 v41, v41, v42
v_lshlrev_b32 v41, 4, v41
v_add_u32 v96, v40, v41
v_xor_b32 v41, 64, v41
v_add_u32 v97, v40, v41
v_add_u32 v97, %d, v97
v_add_u32 v98, %d, v96
v_add_u32 v99, %d, v97
''' % (10240 - 1024, 2 * (10240 - 1024), 2 * (10240 - 1024)))
vX0, vW0 = 96, 100
a('s_waitcnt lgkmcnt(0)')
stamp('karg')
vRAW, vDT, vP2, vDSK = 48, 54, 56, 62
srd(a, rU, pU, 2621440)
srd(a, rW1, pW1, 640 * 1536 * 2)

def dma_setup():
    a('s_lshl_b32 s79, s81, 7')
    a('s_mul_i32 s80, s81, %d' % (64 * 3072))
    a('s_add_u32 s81, s81, 1')
    a('s_cmp_ge_u32 s81, 10')
    a('s_cselect_b32 s81, 0, s81')
tCH = {}
def dma_ops(c):
    ops = []
    for j in range(7):
        def f(j=j):
            if j in (0, 4):
                off = SL[c % 5] + (4096 if j >= 4 else 0)
                a('s_add_u32 m0, s78, %d' % off if off else 's_mov_b32 m0, s78')
                if j == 0: dma_setup()
                else: a('s_nop 0')
            if j < 4:
                t = a.vmem('buffer_load_dwordx4 %s, %s, s79 offen offset:%d lds' % (v(vDX + j), s(rU, 4), 1024 * j))
            else:
                t = a.vmem('buffer_load_dwordx4 %s, %s, s80 offen offset:%d lds' % (v(vDW + j - 4), s(rW1, 4), 1024 * (j - 4)))
            if j == 6: tCH[c] = t
        ops.append(f)
    return ops
def dma_all_x(c, sreg):
    for w in range(4):
        a('s_mov_b32 m0, %d' % (SL[c] + 7168 * w))
        a('s_add_u32 s4, s%d, %d' % (sreg, w * 32 * 1280) if w else 's_mov_b32 s4, s%d' % sreg)
        for j in range(4): t = a.vmem('buffer_load_dwordx4 %s, %s, s4 offen offset:%d lds' % (v(vX0 + j), s(rU, 4), 1024 * j))
    return t
def dma_all_w(c, sreg):
    for w in range(4):
        a('s_mov_b32 m0, %d' % (SL[c] + 7168 * w + 4096))
        a('s_add_u32 s4, s%d, %d' % (sreg, w * 16 * 3072) if w else 's_mov_b32 s4, s%d' % sreg)
        for j in range(3): t = a.vmem('buffer_load_dwordx4 %s, %s, s4 offen offset:%d lds' % (v(vW0 + j), s(rW1, 4), 1024 * j))
    return t

a('s_cmp_eq_u32 s8, 3')
a('s_cbranch_scc1 L_f3')
for j, ptr in enumerate((pAre, pAim, pBre, pBim, pCre, pCim)):
    a('global_load_dword %s, v63, %s' % (v(vRAW + j), s(ptr, 2)))
a('global_load_short_d16_hi %s, v64, %s' % (v(vDT), s(pLdt, 2)))
for j, ptr in enumerate((pAre, pAim, pBre, pBim, pCre, pCim)):
    a('global_load_short_d16_hi %s, v65, %s offset:256' % (v(vP2 + j), s(ptr, 2)))
a('global_load_short_d16_hi %s, v64, %s' % (v(vDSK), s(pDsk, 2)))
if args.pbar: a('s_barrier')
a('s_branch L_fj')
a('L_f3:')
dma_setup()
a('s_mov_b32 s82, s80')
if args.pbar == 1: a('s_barrier')
tX0 = dma_all_x(0, 79)
if args.pbar == 2: a('s_barrier')
a('''
v_min_u32 v40, 59, v1
v_mul_u32_u24 v41, 5462, v40
v_lshrrev_b32 v41, 16, v41
v_mul_u32_u24 v42, 12, v41
v_sub_u32 v42, v40, v42
v_mul_u32_u24 v41, 3072, v41
v_lshl_add_u32 v41, v42, 7, v41
s_mul_i32 s4, s86, %d
s_mul_i32 s5, s87, 1536
s_add_u32 s4, s4, s5
''' % (20 * 3072))
for i in range(4):
    a.vmem('buffer_load_dword v%d, v41, %s, s4 offen' % (48 + i, s(rW1, 4)))
    if i < 3: a('s_add_u32 s4, s4, %d' % (5 * 3072))
a('''
s_add_u32 s4, s90, 4
s_cmp_ge_u32 s4, 10
s_cselect_b32 s5, 10, 0
s_sub_u32 s4, s4, s5
s_cmp_ge_u32 s4, 5
s_cselect_b32 s5, 5, 0
s_sub_u32 s4, s4, s5
s_lshl_b32 s4, s4, 7
s_lshl_b32 s5, s9, 3
s_add_u32 s5, s5, s88
s_mul_i32 s5, s5, %d
s_add_u32 s4, s4, s5
v_and_b32 v40, 31, v1
v_mul_u32_u24 v40, 640, v40
''' % (16 * 1280))
a.vmem('buffer_load_dword v52, v40, %s, s4 offen' % s(rU, 4))
a('L_fj:')
srd(a, rW2, pW2, 640 * 1536 * 2)
srd(a, rWS, pWs, WS_SIZE)
srd(a, rOUT, pOut, 2621440)
srd(a, rGW, pGW, 1280)
a('''
s_or_b32 s6, s6, 1
s_or_b32 s4, s2, s8
s_cmp_lg_u32 s4, 0
s_cbranch_scc1 L_nononce
v_mov_b32 v40, s6
global_store_dword v3, v40, s[44:45] sc1
L_nononce:
s_lshr_b32 s12, s88, 2         ; half
s_and_b32 s89, s88, 3
s_lshl_b32 s11, s87, 2
s_add_u32 s11, s11, s89        ; cb8
s_add_u32 s76, s8, s89
s_and_b32 s76, s76, 3          ; own tile
s_cmp_eq_u32 s89, 3
s_cselect_b32 s98, -1, 0
s_cmp_eq_u32 s87, 0
s_cselect_b32 s98, -1, s98
s_mov_b32 s99, s98             ; exec mask of the u^T stores
s_lshl_b32 s92, s92, 1
s_add_u32 s92, s92, s93        ; o
s_mul_i32 s83, s8, %d
s_mov_b32 s72, 0x3fb8aa3b
s_mov_b32 s73, 0x3e22f983
s_mov_b32 s74, 0x4138aa3b
s_mov_b32 s75, 0x3fa2f983
s_mov_b32 s93, 0xffff0000
''' % TABSZ)
a('s_mul_i32 s5, s10, 192')
for j in range(3):
    a('''
    v_add_u32 v40, %d, v1
    v_mul_u32_u24 v41, 5462, v40
    v_lshrrev_b32 v41, 16, v41
    v_mul_u32_u24 v42, 12, v41
    v_sub_u32 v42, v40, v42
    v_mul_u32_u24 v41, 3072, v41
    v_lshl_add_u32 v41, v42, 4, v41
    v_add_u32 v41, s5, v41
    v_subrev_u32 %s, %d, v41
    ''' % (64 * j, v(vW0 + j), 1024 * j))
a('s_mul_i32 s4, s8, %d' % (32 * 1280))
for j in range(4): a('v_add_u32 %s, s4, %s' % (v(vDX + j), v(vX0 + j)))
a('s_mul_i32 s4, s8, %d' % (16 * 3072))
for j in range(3): a('v_add_u32 %s, s4, %s' % (v(vDW + j), v(vW0 + j)))

def common_addrs():
    a('''
    v_and_b32 v44, 31, v1
    v_lshrrev_b32 v45, 5, v1
    v_bfe_u32 v46, v1, 2, 2
    v_and_b32 v47, 3, v1
    v_bfe_u32 v43, v1, 4, 1
    v_and_b32 v29, 15, v1
    v_lshrrev_b32 v28, 4, v1
    v_bfe_u32 v40, v1, 1, 3
    v_xor_b32 v40, v40, v45
    v_lshlrev_b32 v40, 4, v40
    v_lshl_add_u32 v40, v44, 7, v40
    v_add_u32 v12, s78, v40
    v_xor_b32 v13, 32, v12
    v_xor_b32 v14, 64, v12
    v_xor_b32 v15, 96, v12
    ''')
    for k in range(4): a('v_add_u32 %s, %d, %s' % (v(vXB + k), SL[1], v(vXA + k)))
    a('''
    v_lshl_add_u32 v40, v45, 3, v46
    v_mul_u32_u24 v40, 192, v40
    v_lshl_add_u32 v40, v43, 5, v40
    v_lshl_add_u32 v40, v47, 3, v40
    v_add_u32 v20, %d, v40
    v_add_u32 v21, %d, v40
    v_add_u32 v22, %d, v40
    ''' % (4096, 4096 + SL[0], 4096 + SL[2]))
    a('''
    s_lshl_b32 s4, s12, 1
    s_lshr_b32 s5, s76, 1
    s_add_u32 s4, s4, s5
    s_mul_i32 s4, s4, 7168
    s_and_b32 s5, s76, 1
    s_lshl_b32 s5, s5, 11
    s_add_u32 s4, s4, s5
    v_lshrrev_b32 v40, 1, v29
    v_xor_b32 v40, v40, v28
    v_lshlrev_b32 v40, 4, v40
    v_lshl_add_u32 v40, v29, 7, v40
    v_add_u32 %s, s4, v40
    v_xor_b32 %s, 64, %s
    v_add_u32 %s, %d, %s
    v_add_u32 %s, %d, %s
    v_lshlrev_b32 v11, 4, v28
    v_add_u32 v11, %d, v11
    s_lshl_b32 s4, s13, 7
    v_add_u32 v23, s4, v11
    v_mov_b32 v24, 0
    v_mov_b32 v25, 0
    v_mov_b32 v26, 0
    v_mov_b32 v27, 0
    ''' % (v(vGXA), v(vGXA + 1), v(vGXA), v(vGXB), SL[1], v(vGXA), v(vGXB + 1), SL[1], v(vGXA + 1), L_GW))
    a('''
    s_lshl_b32 s4, s13, 7
    s_lshl_b32 s5, s9, 2
    s_add_u32 s4, s4, s5
    v_mov_b32 v31, s4
    s_lshl_b32 s4, s4, 5
    s_add_u32 s4, s4, %d
    v_writelane_b32 v31, s4, 1
    s_and_b32 s4, s2, 7
    s_lshl_b32 s4, s4, 2
    s_lshr_b32 s5, s86, 3
    s_add_u32 s4, s4, s5
    s_lshl_b32 s4, s4, 5
    s_and_b32 s5, s86, 7
    s_add_u32 s4, s4, s5
    s_lshl_b32 s4, s4, 2
    s_add_u32 s4, s4, %d
    v_writelane_b32 v31, s4, 2
    s_lshl_b32 s4, s4, 5
    s_add_u32 s4, s4, %d
    v_writelane_b32 v31, s4, 3
    ''' % (WS_PRIV, WS_FW, WS_PRIV))
    a('''
    s_lshl_b32 s4, s9, 1
    s_lshr_b32 s5, s8, 1
    s_add_u32 s4, s4, s5
    s_lshl_b32 s4, s4, 2
    s_lshr_b32 s5, s10, 2
    s_add_u32 s4, s4, s5
    s_lshl_b32 s4, s4, 4
    s_and_b32 s5, s10, 3
    s_add_u32 s4, s4, s5
    s_lshl_b32 s4, s4, 1
    s_and_b32 s5, s8, 1
    s_add_u32 s4, s4, s5
    s_lshl_b32 s4, s4, 2
    s_add_u32 s4, s4, %d
    v_mov_b32 %s, s4
    s_lshl_b32 s4, s4, 5
    s_add_u32 s4, s4, %d
    v_writelane_b32 %s, s4, 1
    ''' % (WS_FH, v(vFH), WS_PRIV, v(vFH)))
    a('''
    v_lshlrev_b32 %s, 4, v0
    v_add_u32 %s, %d, %s
    v_cmp_eq_u32 vcc, 0, v0
    v_min_u32 v40, 47, v1
    v_lshrrev_b32 v41, 2, v40
    v_cndmask_b32 %s, -1, v3, vcc
    v_mul_u32_u24 v41, %d, v41
    v_and_b32 v40, 3, v40
    v_lshl_add_u32 %s, v40, 3, v41
    v_mul_u32_u24 v40, %d, v43
    v_lshl_add_u32 v40, v45, 8, v40
    v_lshl_add_u32 %s, v29, 4, v40
    s_lshl_b32 s4, s9, 3
    s_lshl_b32 s5, s8, 1
    s_add_u32 s4, s4, s5
    s_mul_i32 s4, s4, 48
    s_mul_i32 s5, s10, 3
    s_add_u32 s4, s4, s5
    s_lshl_b32 s91, s4, 10
    s_add_u32 s91, s91, %d
    v_mul_u32_u24 v40, %d, v46
    v_lshl_add_u32 v40, v47, 3, v40
    v_lshlrev_b32 v42, 4, v28
    v_sub_u32 v40, v40, v42
    s_cmp_eq_u32 s8, 3
    s_cselect_b32 s5, 0, s8
    s_mul_i32 s4, s5, %d
    s_add_u32 s4, s4, %d
    v_add_u32 v32, s4, v40
    v_lshl_add_u32 v40, v29, 5, v42
    s_mul_i32 s4, s5, %d
    s_add_u32 s4, s4, %d
    v_add_u32 v33, s4, v40
    v_lshlrev_b32 v40, 5, v29
    v_lshl_add_u32 v34, v45, 4, v40
    v_lshl_add_u32 v34, v43, 9, v34
    v_lshl_add_u32 v35, v28, 3, v40
    ''' % (v(vUS), v(vUS), L_U + 32, v(vUS), v(vUM), UC, v(vUP), 48 * 1024, v(vHS), WS_HP, UC, UCH, L_U + 56, KLSZ, L_KL + 32))
    for n in range(3):
        a('s_add_u32 s4, s8, %d' % (n + 1))
        a('s_and_b32 s4, s4, 3')
        a('s_mul_i32 s4, s4, %d' % (3 * 5120))
        if n: a('s_add_u32 s4, s4, %d' % (n * 5120))
        a('v_add_u32 v%d, s4, v2' % (vRW + n))
    a('s_mul_i32 s4, s8, %d' % (3 * 5120))
    a('v_add_u32 v%d, s4, v2' % vRR)
    a('''
    s_cmp_lt_u32 s8, 2
    s_cselect_b32 s85, s14, s3
    s_lshr_b32 s85, s85, 6
    s_lshl_b32 s85, s85, 7
    s_lshl_b32 s4, s9, 3
    s_lshl_b32 s5, s12, 2
    s_add_u32 s4, s4, s5
    s_mul_i32 s4, s4, 48
    s_mul_i32 s5, s8, 12
    s_add_u32 s4, s4, s5
    s_lshl_b32 s4, s4, 10
    s_add_u32 s4, s4, %d
    ''' % WS_HP)
    a('s_mov_b32 s79, s4')
    a('''
    s_lshl_b32 s4, s8, 10
    s_add_u32 s4, s4, %d
    s_mul_i32 s88, s14, %d
    s_add_u32 s88, s88, s4
    s_mul_i32 s89, s15, %d
    s_add_u32 s89, s89, s4
    s_mul_i32 s90, s3, %d
    s_add_u32 s90, s90, s4
    s_mul_i32 s87, s11, 48
    s_mul_i32 s4, s8, 12
    s_add_u32 s87, s87, s4
    s_mul_i32 s87, s87, 5120
    s_add_u32 s87, s87, %d
    v_add_u32 v250, s87, v2
    v_add_u32 v251, 4096, v250
    s_mov_b32 s87, s79
    s_lshl_b32 s86, s11, 2
    s_add_u32 s86, s86, s8
    s_lshl_b32 s86, s86, 7
    s_add_u32 s86, s86, %d
    ''' % (WS_UT + 128 - 8, UT_PITCH, UT_PITCH, UT_PITCH, WS_W2P, WS_FW))

cold = []
def scheck_ops(label, regs, vaddr_code, soff, per=2):
    ins = ['s_xor_b64 %s, %s, s[6:7]' % (s(regs[0], 2), s(regs[0], 2))]
    for r in regs[1:]:
        ins.append('s_xor_b64 %s, %s, s[6:7]' % (s(r, 2), s(r, 2)))
        ins.append('s_or_b64 %s, %s, %s' % (s(regs[0], 2), s(regs[0], 2), s(r, 2)))
    last = ins.pop()
    ops = [(lambda c='\n'.join(ins[i:i + per]): a(c)) for i in range(0, len(ins), per)]
    def fin():
        a(last)
        a('s_cbranch_scc1 %s_slow' % label)
        a('%s_ok:' % label)
        cold.append((label, vaddr_code, soff))
    return ops + [fin]
NL = 'global_load_dword v30, v3, s[44:45] sc1'

if args.dbgK: a('s_mov_b32 s34, s94')
a('s_mov_b32 s84, s86')
a('s_lshl_b32 s35, s96, 1')
a('s_add_u32 s35, s35, s12')
a('s_mul_i32 s35, s35, 3')
a('s_lshr_b32 s35, s35, 1')
if 'rot' not in X: a('s_mov_b32 s35, 0')
common_addrs()
a('s_cmp_eq_u32 s8, 3')
a('s_cbranch_scc1 L_loader')

sn0 = list(stamp_names)
vKA, vKB, vDMP, vE, vKW = 68, 69, 70, 72, 65
a('''
v_mul_u32_u24 v40, %d, v44
v_lshl_add_u32 v40, v45, 4, v40
v_add_u32 v68, s83, v40
v_min_u32 v40, 20, v44
v_add_u32 v40, 32, v40
v_mul_u32_u24 v40, %d, v40
v_lshl_add_u32 v40, v45, 4, v40
v_add_u32 v69, s83, v40
v_mul_u32_u24 v40, %d, v44
v_lshl_add_u32 v70, v45, 4, v40
v_add_u32 v70, s83, v70
''' % (TP, TP, DP))
a('''
v_and_b32 v40, 1, v1
v_lshrrev_b32 v41, 1, v1
v_lshlrev_b32 v41, 2, v41
v_mul_u32_u24 v42, %d, v40
v_add_u32 v72, v42, v41
v_mul_u32_u24 v42, %d, v40
v_add_u32 v73, v42, v41
v_add_u32 v73, %d, v73
v_add_u32 v43, 1, v1
v_and_b32 v40, 1, v43
v_lshrrev_b32 v41, 1, v43
v_lshlrev_b32 v41, 2, v41
v_mul_u32_u24 v42, %d, v40
v_add_u32 v74, v42, v41
v_add_u32 v74, %d, v74
v_cmp_eq_u32 vcc, 63, v1
v_mov_b32 v42, %d
v_mul_u32_u24 v40, %d, v45
v_cndmask_b32 v74, v74, v42, vcc
v_lshl_add_u32 v75, v44, 2, v40
v_add_u32 v75, %d, v75
v_lshrrev_b32 v40, 5, v43
v_and_b32 v41, 31, v43
v_mul_u32_u24 v40, %d, v40
v_lshl_add_u32 v76, v41, 2, v40
v_add_u32 v76, %d, v76
v_mul_u32_u24 v40, %d, v28
v_lshl_add_u32 v77, v29, 3, v40
v_add_u32 v77, %d, v77
v_lshrrev_b32 v40, 4, v43
v_and_b32 v41, 15, v43
v_mul_u32_u24 v40, %d, v40
v_lshl_add_u32 v78, v41, 3, v40
v_add_u32 v78, %d, v78
''' % (4 * DP, 2 * DP, 8 * DP, 2 * DP, 8 * DP, 12 * DP, 2 * DP, 12 * DP, 2 * DP, 12 * DP, DP, 16 * DP, DP, 16 * DP))
for i in range(7): a('v_add_u32 %s, s83, %s' % (v(vE + i), v(vE + i)))
a('''
s_mul_i32 s4, s8, %d
s_add_u32 s4, s4, %d
v_lshlrev_b32 v65, 3, v1
v_add_u32 v65, s4, v65
v_add_u32 v66, s4, v2
v_lshlrev_b32 v67, 5, v1
v_add_u32 v67, s4, v67
v_mov_b32 v40, 0
v_mov_b32 v41, 0
ds_write_b64 v65, v[40:41]
s_mov_b32 m0, s83
v_mov_b32 v42, 0x3f80
ds_write_addtid_b32 v42 offset:0
''' % (KLSZ, L_KL))
dma_setup(); dma_setup(); dma_setup()
vA1 = 80
vSET = [96, 102]
vW = 108
vST = 190
def cmul(d, x, y, t):
    return ('v_pk_mul_f32 %s, %s, %s op_sel:[0,0] op_sel_hi:[1,0]' % (v(t, 2), v(x, 2), v(y, 2)),
            'v_pk_fma_f32 %s, %s, %s, %s op_sel:[1,1,0] op_sel_hi:[0,1,1] neg_lo:[1,0,0]' % (v(d, 2), v(x, 2), v(y, 2), v(t, 2)))
def kgen_setup(k, tmp):
    Q1, Z, S0 = vSET[k & 1], vSET[k & 1] + 2, vSET[k & 1] + 4
    if k < 2:
        P = tmp
        if k == 0:
            a('v_mul_f32 %s, s72, %s' % (v(vDT), v(vDT)))
            a('v_exp_f32 %s, %s' % (v(vDT), v(vDT)))
        for j in range(6):
            a(('v_lshlrev_b32 %s, 16, %s' if k == 0 else 'v_and_b32 %s, s93, %s') % (v(P + j), v(vRAW + j)))
            if k == 0 and j == 1: a('v_cvt_pk_bf16_f32 %s, %s, %s' % (v(vDT), v(vDT), v(vDT)))
            if k == 0 and j == 3: a('v_and_b32 %s, s93, %s' % (v(vDT), v(vDT)))
    else:
        P = vP2
    l1, l8, cs1, cs8, m, bc, t0 = [tmp + 6 + 2 * i for i in range(7)]
    m0_, m1_ = cmul(bc, P + 2, P + 4, t0)
    a('v_pk_mul_f32 %s, %s, %s op_sel_hi:[1,0]' % (v(l8, 2), v(P, 2), v(vDT, 2)))
    a(m0_)
    a('v_pk_mul_f32 %s, %s, s[72:73]' % (v(l1, 2), v(l8, 2)))
    a('v_pk_mul_f32 %s, %s, s[74:75]' % (v(l8, 2), v(l8, 2)))
    a(m1_)
    a('v_fract_f32 %s, %s' % (v(l1 + 1), v(l1 + 1)))
    a('v_fract_f32 %s, %s' % (v(l8 + 1), v(l8 + 1)))
    a('v_exp_f32 %s, %s' % (v(m + 1), v(l8)))
    a('v_exp_f32 %s, %s' % (v(m), v(l1)))
    a('v_cos_f32 %s, %s' % (v(cs8), v(l8 + 1)))
    a('v_sin_f32 %s, %s' % (v(cs8 + 1), v(l8 + 1)))
    a('v_cos_f32 %s, %s' % (v(cs1), v(l1 + 1)))
    a('v_sin_f32 %s, %s' % (v(cs1 + 1), v(l1 + 1)))
    a('v_pk_mul_f32 %s, %s, %s op_sel:[0,1] op_sel_hi:[1,1]' % (v(Q1, 2), v(cs8, 2), v(m, 2)))
    a('v_pk_mul_f32 %s, %s, %s op_sel_hi:[1,0]' % (v(S0, 2), v(bc, 2), v(vDT, 2)))
    a('v_pk_mul_f32 %s, %s, %s op_sel_hi:[1,0]' % (v(Z, 2), v(cs1, 2), v(m, 2)))
GROUPS = [[('Q2','Q1','Q1'),('S1','S0','Z')], [('Q4','Q2','Q2'),('Q3','Q2','Q1'),('S2','S1','Z')],
          [('Q8','Q4','Q4'),('Q5','Q4','Q1'),('S3','S2','Z'),('Q6','Q4','Q2')],
          [('Q16','Q8','Q8'),('Q7','Q4','Q3'),('S4','S3','Z'),('Q9','Q8','Q1')],
          [('Q32','Q16','Q16'),('Q10','Q8','Q2'),('S5','S4','Z'),('Q11','Q8','Q3')],
          [('S8','S0','Q32'),('Q12','Q8','Q4'),('S6','S5','Z'),('Q13','Q8','Q5')],
          [('S12','S8','Q32'),('S10','S4','Q32'),('S7','S6','Z'),('Q14','Q8','Q6')],
          [('S14','S12','Q32'),('S13','S10','Q32'),('S9','S2','Q32'),('Q15','Q8','Q7')],
          [('S16','S14','Q32'),('S15','S13','Q32'),('S11','S6','Q32'),('Q17','Q16','Q1')],
          [('S17','S16','Q32'),('Q18','Q16','Q2'),('Q19','Q16','Q3'),('Q20','Q16','Q4')],
          [('S18','S17','Q32'),('Q21','Q16','Q5'),('Q22','Q16','Q6'),('Q23','Q16','Q7')],
          [('S19','S18','Q32'),('Q24','Q16','Q8'),('Q25','Q16','Q9'),('Q26','Q16','Q10')],
          [('S20','S19','Q32'),('Q27','Q16','Q11'),('Q28','Q16','Q12'),('Q29','Q16','Q13')],
          [('Q30','Q16','Q14'),('Q31','Q16','Q15')]]
LASTUSE = {}
for gi, grp in enumerate(GROUPS):
    for nm, x, y in grp: LASTUSE[x] = gi; LASTUSE[y] = gi
def kgen_body(k, mq):
    R = {'Q1': vSET[k & 1], 'Z': vSET[k & 1] + 2, 'S0': vSET[k & 1] + 4}
    tmps = [vW + 2 * i for i in range(4)]
    cv = [vW + 8 + i for i in range(10)]
    free = list(range(vW + 18, vST, 2))
    own = {}
    pend = ['S0', 'Q1']
    for gi, grp in enumerate(GROUPS):
        ins = []
        for i, (nm, x, y) in enumerate(grp):
            R[nm] = own[nm] = free.pop(0)
            ins.append(cmul(R[nm], R[x], R[y], tmps[i]))
        for m_, f_ in ins: a(m_)
        for m_, f_ in ins: a(f_)
        pend += [nm for nm, _, _ in grp if nm != 'Q32']
        if gi % 2 == 1:
            if mq: mq.pop(0)()
            for i, nm in enumerate(pend):
                a('v_cvt_pk_bf16_f32 %s, %s, %s%s' % (v(cv[i]), v(R[nm]), '' if nm[0] == 'Q' else '-', v(R[nm] + 1)))
            if mq: mq.pop(0)()
            for i, nm in enumerate(pend):
                row = int(nm[1:]) + (0 if nm[0] == 'Q' else 32)
                a.ds('ds_write_addtid_b32 %s offset:%d' % (v(cv[i]), row * TP))
            pend.clear()
            for nm in list(own):
                if LASTUSE.get(nm, -1) <= gi: free.append(own.pop(nm))
    assert not pend and not mq
def kgen_reads(first):
    mq = []
    for kk in range(8):
        a.ds('ds_read_b128 %s, %s offset:%d' % (ac(8 * kk, 4), v(vKA), 32 * kk))
        t = a.ds('ds_read_b128 %s, %s offset:%d' % (ac(8 * kk + 4, 4), v(vKB), 32 * kk))
        def f(kk=kk, t=t):
            a.wlg(t)
            c = '0' if (first and kk == 0) else v(vA1, 16)
            a('v_mfma_f32_32x32x16_bf16 %s, %s, %s, %s' % (v(vA1, 16), ac(8 * kk, 4), ac(8 * kk + 4, 4), c))
        mq.append(f)
    return mq
a('s_waitcnt vmcnt(7)')
stamp('par')
kgen_setup(0, vST)
kgen_body(0, [])
mq = kgen_reads(True)
kgen_setup(1, vST)
a.wlg0()
stamp('r0')
kgen_body(1, mq)
mq = kgen_reads(False)
a('s_waitcnt vmcnt(0)')
kgen_setup(2, vST)
a.wlg0()
stamp('r1')
kgen_body(2, mq)
for f in kgen_reads(False): f()
a('v_cmp_eq_u32 vcc, 0, v1')
a('s_nop 7')
a('v_cndmask_b32 v40, 0, %s, vcc' % v(vDSK))
a('s_nop 2')
for i in range(4): a('ds_write_b128 %s, %s offset:%d' % (v(vDMP), v(vA1 + 4 * i, 4), 32 * i))
P4 = DP // 4
a('ds_read2_b32 v[116:117], v73 offset0:0 offset1:%d' % P4)
a('ds_read_b32 v122, v74')
a('ds_read2_b32 v[118:119], v75 offset0:0 offset1:%d' % P4)
a('ds_read_b32 v123, v76')
a('ds_read_b64 v[120:121], v77')
a('ds_read_b32 v124, v78')
a('ds_read2_b32 v[112:113], v72 offset0:0 offset1:%d' % P4)
a('ds_read2_b32 v[114:115], v72 offset0:%d offset1:%d' % (2 * P4, 3 * P4))
cv = lambda d, x, y: a('v_cvt_pk_bf16_f32 v%d, v%d, v%d' % (d, x, y))
a('s_waitcnt lgkmcnt(4)')
cv(146, 116, 116); cv(147, 117, 122)
cv(148, 118, 118); cv(149, 118, 119); cv(150, 119, 119); cv(151, 123, 123)
a('s_waitcnt lgkmcnt(2)')
cv(152, 120, 120); cv(153, 120, 120); cv(154, 120, 121); cv(155, 121, 121)
cv(156, 121, 121); cv(157, 121, 121); cv(158, 124, 124); cv(159, 124, 124)
a('s_waitcnt lgkmcnt(0)')
a('v_add_f32 v112, v112, v40')
cv(145, 114, 115); cv(144, 112, 113)
a('ds_write_b64 v65, v[146:147] offset:1024')
a('ds_write_b128 v66, v[148:151] offset:1536')
a('ds_write_b128 v67, v[152:155] offset:2560')
a('ds_write_b128 v67, v[156:159] offset:2576')
a('ds_write_b64 v65, v[144:145] offset:512')
if args.dbgK:
    a('s_waitcnt lgkmcnt(0)')
    a('s_mul_i32 s5, s34, 4096')
    a('s_add_u32 s5, s5, %d' % WS_DBG)
    for i in range(4):
        a('ds_read_b128 v[160:163], v66 offset:%d' % (512 + 1024 * i))
        a('s_waitcnt lgkmcnt(0)')
        a('buffer_store_dwordx4 v[160:163], v2, %s, s5 offen offset:%d' % (RWS, 1024 * i))
        a('s_waitcnt vmcnt(0)')
sn_k = list(stamp_names)
a('s_branch L_p1done')

a('L_loader:')
stamp_names[:] = sn0
a.lg_done = a.lg
TPP = 288
a("""
v_lshl_add_u32 v40, v47, 3, v46
v_bfe_u32 v41, v40, 1, 3
v_xor_b32 v41, v41, v45
v_lshlrev_b32 v41, 4, v41
v_lshl_add_u32 v41, v40, 7, v41
v_lshl_add_u32 v104, v43, 3, v41
v_xor_b32 v105, 32, v104
v_xor_b32 v106, 64, v104
v_xor_b32 v107, 96, v104
v_add_u32 v104, %d, v104
v_add_u32 v105, %d, v105
v_add_u32 v106, %d, v106
v_add_u32 v107, %d, v107
v_lshl_add_u32 v40, v28, 2, v47
v_mul_u32_u24 v40, %d, v40
v_lshl_add_u32 v108, v46, 4, v40
v_add_u32 v108, %d, v108
v_mul_u32_u24 v40, %d, v28
v_lshl_add_u32 v109, v29, 4, v40
v_add_u32 v109, %d, v109
v_mul_u32_u24 v40, %d, v28
v_lshl_add_u32 v110, v29, 4, v40
s_mul_i32 s34, s13, %d
s_lshl_b32 s5, s9, 8
s_add_u32 s34, s34, s5
s_add_u32 s34, s34, %d
""" % (SL[0], SL[0], SL[0], SL[0], TPP, SL[2], TPP, SL[2], UT_PITCH, 64 * UT_PITCH, WS_UT + 128))
a("""
s_and_b32 s4, s2, 7
s_mul_i32 s4, s4, %d
s_add_u32 s4, s4, %d
s_mul_i32 s5, s84, 3
v_lshl_add_u32 v238, v43, 2, v46
v_mul_u32_u24 v238, 160, v238
v_mul_u32_u24 v239, 40, v47
v_add_u32 v238, v238, v239
v_lshlrev_b32 v239, 4, v44
v_add_u32 v239, s4, v239
""" % (48 * 5120, WS_W2P))
for j in range(8):
    a("""
    v_add_u32 v40, %d, v45
    v_min_u32 v40, 14, v40
    v_mul_u32_u24 v41, 13108, v40
    v_lshrrev_b32 v41, 16, v41
    v_mul_u32_u24 v42, 5, v41
    v_sub_u32 v40, v40, v42
    v_mul_u32_u24 v42, 2560, v41
    v_lshl_add_u32 v42, v40, 3, v42
    v_add_u32 v%d, v42, v238
    v_add_u32 v41, s5, v41
    v_lshrrev_b32 v42, 1, v41
    v_mul_u32_u24 v42, 5120, v42
    v_lshl_add_u32 v42, v40, 10, v42
    v_and_b32 v41, 1, v41
    v_lshl_add_u32 v42, v41, 9, v42
    v_add_u32 v%d, v42, v239
    """ % (2 * j, 56 + j, 64 + j))
for j in range(8):
    a('''
    v_add_u32 v40, %d, v1
    v_min_u32 v40, 479, v40
    v_mul_u32_u24 v41, 6554, v40
    v_lshrrev_b32 v41, 16, v41
    v_mul_u32_u24 v42, 10, v41
    v_sub_u32 v42, v40, v42
    v_mul_u32_u24 v41, 1280, v41
    v_lshl_add_u32 v%d, v42, 4, v41
    ''' % (64 * j, 72 + j))
def w2_stage():
    a('s_mov_b32 m0, %d' % L_GW)
    a('s_mul_i32 s4, s84, %d' % (48 * 1280))
    a.vmem('buffer_load_dwordx4 v2, %s, 0 offen lds' % s(rGW, 4))
    a.vmem('buffer_load_dwordx4 v2, %s, 0 offen offset:1024 lds' % s(rGW, 4))
    a('s_and_b32 s5, s2, 7')
    a('s_mul_i32 s5, s5, 160')
    a('s_add_u32 s4, s4, s5')
    for j in range(8):
        a('s_mov_b32 m0, %d' % (L_W2S + 1024 * j))
        a('s_nop 0')
        t = a.vmem('buffer_load_dwordx4 v%d, %s, s4 offen lds' % (72 + j, s(rW2, 4)))
    return t
stamp('par')
a('s_cmp_eq_u32 s98, 0')
a('s_cbranch_scc1 L_notr')
st = a.save()
a.wvm(tX0)
toks = {}
for n in range(4):
    for w in range(4):
        for h in range(2):
            toks[n, w] = a.ds('ds_read_b64_tr_b16 %s, v%d offset:%d' % (v(112 + 16 * n + 4 * w + 2 * h, 2), 104 + (n ^ h), 7168 * w + 512 * h))
for n in range(4):
    for w in range(4):
        a.wlg(toks[n, w])
        a.ds('ds_write_b128 v108, %s offset:%d' % (v(112 + 16 * n + 4 * w, 4), 16 * n * TPP + 64 * w))
for m in range(16):
    toks[m] = a.ds('ds_read_b128 %s, v109 offset:%d' % (v(112 + 4 * m, 4), 4 * m * TPP))
for m in range(16):
    a.wlg(toks[m])
    a('buffer_store_dwordx4 %s, v110, %s, s34 offen sc1' % (v(112 + 4 * m, 4), RWS))
    if m < 15: a('s_add_u32 s34, s34, %d' % (4 * UT_PITCH))
a.restore(st)
a('L_notr:')
stamp('r0')
tW2L = w2_stage()
a.vmem(NL)
tCH[0] = dma_all_w(0, 82)
dma_setup()
dma_all_x(1, 79)
tCH[1] = dma_all_w(1, 80)
def w2_repack():
    global tW2S
    a.wvm(tW2L)
    for j in range(8):
        for h in range(2):
            toks[j] = a.ds('ds_read_b64_tr_b16 %s, v%d offset:%d' % (v(176 + 4 * j + 2 * h, 2), 56 + j, L_W2S + 1280 * h))
    for j in range(8):
        a.wlg(toks[j])
        tW2S = a.vmem('buffer_store_dwordx4 %s, v%d, %s, 0 offen sc1' % (v(176 + 4 * j, 4), 64 + j, RWS))
if args.w2pos == 0: w2_repack()
stamp('r1')
dma_setup()
dma_all_x(2, 79)
tCH[2] = dma_all_w(2, 80)
if args.w2pos == 1: w2_repack()
assert stamp_names == sn_k
a.wvm(tCH[0])
a('''
v_cmp_eq_u32 vcc, 0, v30
s_cbranch_vccz L_sn_ok
s_mov_b32 s82, 0x40000
L_sn_lp:
s_sleep 1
%s
s_waitcnt vmcnt(0)
v_cmp_eq_u32 vcc, 0, v30
s_sub_u32 s82, s82, 1
s_cmp_eq_u32 s82, 0
s_cbranch_scc1 L_sn_ok
s_cbranch_vccnz L_sn_lp
L_sn_ok:
v_mov_b32 v40, %d
ds_write_b32 v40, v30
s_and_b32 exec_lo, s98, 3
s_mov_b32 exec_hi, 0
buffer_store_dword v30, v31, %s, 0 offen sc1
s_mov_b64 exec, -1
s_waitcnt lgkmcnt(0)
L_p1done:
''' % (NL, L_NON, RWS))
a.lg_done = a.lg
stamp('exp')

vACC = 48
vF = [96, 112, 128]
vGF = 144
vUL = 160
def xbase(regA, regB, slot):
    return (regB, SL[slot] - SL[1]) if slot in (1, 2) else (regA, SL[slot])
def g1_reads(n):
    c, kk = divmod(n, 4); slot = c % 5; f = vF[n % 3]
    r, off = xbase(vXA + kk, vXB + kk, slot)
    ops = [('x', 'ds_read_b128 %s, %s offset:%d' % (v(f, 4), v(r), off))]
    wb, wo = {0: (vWB + 1, 0), 1: (vWB + 1, SLOT), 2: (vWB + 2, 0), 3: (vWB, 0), 4: (vWB, SLOT)}[slot]
    for j in range(3):
        for h in range(2):
            ops.append(('w%d' % j, 'ds_read_b64_tr_b16 %s, %s offset:%d' % (v(f + 4 + 4 * j + 2 * h, 2), v(wb), wo + kk * 7168 + h * 768 + 64 * j)))
    return ops

a('s_barrier')
tok = {}
tok[0] = {}
for nm, ins in g1_reads(0): tok[0][nm] = a.ds(ins)
a('v_mov_b32 v40, %d' % L_NON)
a.ds('ds_read_b32 v30, v40')
tok[1] = {}
for nm, ins in g1_reads(1): tok[1][nm] = a.ds(ins)
tk = {}
def pub1():
    a('s_mov_b64 exec, s[56:57]')
    a('buffer_store_dword v30, v31, %s, 0 offen sc1' % RWS)
    a('s_mov_b64 exec, -1')
SK = [40, 41, 42, 43, 58, 59, 68, 69, 70, 71, 94, 95]
def w2_load(n):
    def f():
        j, i = divmod(n, 5)
        if i == 0: a('s_mul_i32 s96, s%d, 5' % SK[j])
        tk['w2'] = a.vmem('buffer_load_dwordx4 %s, v%d, %s, s96 offen offset:%d sc1' % (ac(4 * n, 4), 251 if i == 4 else 250, RWS, 1024 * (i % 4)))
    return f
def u_load(ch, j):
    def f():
        r = vUL + 8 * ch
        if j == 0: a.vmem('buffer_load_dwordx4 %s, v2, %s, s%d offen offset:8 sc1' % (v(r + 4, 4), RWS, 88 + ch))
        else: tk['u%d' % ch] = a.vmem('buffer_load_dwordx2 %s, v2, %s, s%d offen sc1' % (v(r + 2, 2), RWS, 88 + ch))
    return f
def check_ops():
    return [a.wlg0] + scheck_ops('L_sw', [32, 34, 36, 38], 'v_and_b32 v28, 7, v1\nv_lshlrev_b32 v28, 7, v28', 's86', 3) + \
           scheck_ops('L_su', list(range(16, 32, 2)), 'v_and_b32 v28, 15, v1\nv_lshlrev_b32 v28, 7, v28', 's85', 3)
UO = [184, 196, 232]
def ustage_valu(ch):
    r = vUL + 8 * ch; o = UO[ch]
    def f0():
        a.wvm(tk['u%d' % ch])
        a('v_and_b32 %s, %s, %s' % (v(r + 2), v(vUM), v(r + 2)))
        a('v_and_b32 %s, %s, %s' % (v(r + 3), v(vUM), v(r + 3)))
    ins = []
    for k in range(4): ins.append('v_alignbit_b32 %s, %s, %s, 16' % (v(o + k), v(r + 4 + k), v(r + 3 + k)))
    for k in range(4): ins.append('v_mov_b32 %s, %s' % (v(o + 4 + k), v(r + 3 + k)))
    for k in range(4): ins.append('v_alignbit_b32 %s, %s, %s, 16' % (v(o + 8 + k), v(r + 3 + k), v(r + 2 + k)))
    return [f0] + [(lambda c='\n'.join(ins[i:i + 3]): a(c)) for i in range(0, 12, 3)]
def ustage_writes():
    ops = []
    for ch in range(3):
        for c in range(4):
            r = vUL + 8 * ch + 4 if c == 0 else UO[ch] + 4 * (c - 1)
            ops.append(lambda r=r, off=ch * UCH + c * UC: a.ds('ds_write_b128 %s, %s offset:%d' % (v(vUS), v(r, 4), off)))
    return ops
def upad():
    a('v_mov_b32 v40, 0\nv_mov_b32 v41, 0')
    a.ds('ds_write_b64 %s, v[40:41] offset:%d' % (v(vUP), L_U))

nop = lambda: None
w2q = [w2_load(n) for n in range(60)]
side = dma_ops(3) + dma_ops(4)
side2 = []
extra = {}
extra[(1, 0)] = split('''
v_readfirstlane_b32 s6, v30
v_readfirstlane_b32 s7, v30''')
extra[(1, 1)] = split('''
s_cmp_eq_u32 s8, 3
s_cselect_b32 s56, 12, 0
s_mov_b32 s57, 0''')
for j in range(12):
    extra[(2 + j // 3, j % 3)] = split('''
    s_lshl_b32 s%d, s35, 10
    s_add_u32 s35, s35, 1
    s_cmp_ge_u32 s35, 12
    s_cselect_b32 s35, 0, s35''' % SK[j])
gt = {}
for n in range(40):
    c, kk = divmod(n, 4); slot = c % 5; f = vF[n % 3]
    if kk == 2 and c + 1 < 10:
        b = c + 1
        while b not in tCH: side.pop(0)()
        if b == args.chkb: assert not side2
        a.wvm(tCH[b])
        if b == args.pubb: a.wvm(tW2S)
        a('s_barrier')
        stamp('B%d' % b, 'g1')
        if b == args.pubb: side = [pub1] + side
        if b == args.chkb and 'nou' not in X: side += [u_load(ch, j) for ch in range(3) for j in range(2)]
        if 2 <= b and b + 3 < 10: side += dma_ops(b + 3)
        if b == args.pollb: side2 += [lambda: a('s_load_dwordx16 s[16:31], s[46:47], s85'), lambda: a('s_load_dwordx8 s[32:39], s[46:47], s86')]
        if b == args.chkb - 1: side2 += [nop, nop] + check_ops()
        if b == max(args.chkb, 6): side += [w2q.pop(0) for _ in range(args.w2tail)]
        if b == 8: side2 += [upad]
        if b == 9: side2 += ustage_valu(0) + ustage_valu(1) + ustage_valu(2)
    rd = g1_reads(n + 2) if n + 2 < 40 else []
    tok[n + 2] = {}
    grd = []
    if kk < 2:
        r, off = xbase(vGXA + kk, vGXB + kk, slot)
        grd = [('gx', 'ds_read_b128 %s, %s offset:%d' % (v(vGF + 8 * kk, 4), v(r), off)),
               ('g%d' % kk, 'ds_read_b128 %s, %s offset:%d' % (v(vGF + 8 * kk + 4, 4), v(vGWc), 64 * kk))]
    allrd = [(tok[n + 2], x) for x in rd] + [(gt, x) for x in grd]
    per = [[], [], []]
    for i, r in enumerate(allrd): per[min(2, i * 3 // max(len(allrd), 1))].append(r)
    for j in range(3):
        a.wlg(max(tok[n]['x'], tok[n]['w%d' % j]))
        cin = '0' if n == 0 else v(vACC + 16 * j, 16)
        a('v_mfma_f32_32x32x16_bf16 %s, %s, %s, %s' % (v(vACC + 16 * j, 16), v(f + 4 + 4 * j, 4), v(f, 4), cin))
        for g_ in extra.get((n, j), []): g_()
        for d, (nm, ins) in per[j]:
            if 'nogate' in X and nm[0] == 'g': d[nm] = 0
            else: d[nm] = a.ds(ins)
        if side and (j != 1 or len(side) > 8): side.pop(0)()
        if side2: side2.pop(0)()
    if kk == 1:
        a('s_add_u32 s13, s13, 1')
        a('s_cmp_ge_u32 s13, 10')
        a('s_cselect_b32 s13, 0, s13')
        a('s_lshl_b32 s4, s13, 7')
        a('v_add_u32 %s, s4, %s' % (v(vGWc), v(vGW0)))
    if kk >= 2 and 'nogate' not in X:
        g = kk - 2
        a.wlg(gt['g%d' % g])
        a('v_mfma_f32_16x16x32_bf16 %s, %s, %s, %s' % (v(vGACC, 4), v(vGF + 8 * g + 4, 4), v(vGF + 8 * g, 4), v(vGACC, 4)))
while side: side.pop(0)()
while side2: side2.pop(0)()
stamp('g1')

a('''
s_mov_b32 s72, 0xbfb8aa3b
s_mov_b32 s73, 0xbfb8aa3b
v_mov_b32 v31, %s
s_lshl_b32 s88, s14, 12
s_add_u32 s88, s88, %d
s_lshl_b32 s89, s15, 12
s_add_u32 s89, s89, %d
s_lshl_b32 s90, s3, 12
s_add_u32 s90, s90, %d
s_lshl_b32 s4, s2, 12
s_add_u32 s4, s4, 0x%x
s_cmp_eq_u32 s77, 0
s_cselect_b32 s90, s4, s90
''' % (v(vFH), WS_AT, WS_AT, WS_AT, WS_JUNK))
nsil = args.w2silu
uw = ustage_writes()
def silu_group(g):
    global tH
    j, p = g // 2, g % 2
    x = vACC + 16 * j + 8 * p
    e = 96 + 8 * (g & 1); o = (208, 244)[g & 1]
    nl = nsil * (g + 1) // 6 - nsil * g // 6
    for i in range(4): a('v_pk_mul_f32 %s, %s, s[72:73]' % (v(e + 2 * i, 2), v(x + 2 * i, 2)))
    for i in range(8):
        a('v_exp_f32 %s, %s' % (v(e + i), v(e + i)))
        if i in (1, 6) and nl > (1 if i == 1 else 2): w2q.pop(0)()
        if i == 4 and uw: uw.pop(0)()
    for i in range(4): a('v_pk_add_f32 %s, %s, 1.0 op_sel_hi:[1,0]' % (v(e + 2 * i, 2), v(e + 2 * i, 2)))
    for i in range(8):
        a('v_rcp_f32 %s, %s' % (v(e + i), v(e + i)))
        if i == 3:
            for _ in range(max(nl - 2, 1) if nl else 0): w2q.pop(0)()
        if i in (0, 6) and uw: uw.pop(0)()
    for i in range(4): a('v_pk_mul_f32 %s, %s, %s' % (v(e + 2 * i, 2), v(e + 2 * i, 2), v(x + 2 * i, 2)))
    for i in range(4): a('v_cvt_pk_bf16_f32 %s, %s, %s' % (v(o + i), v(e + 2 * i), v(e + 2 * i + 1)))
    tH = a.vmem('buffer_store_dwordx4 %s, %s, %s, s91 offen offset:%d sc1' % (v(o, 4), v(vHS), RWS, 1024 * j + 512 * p))
for g in range(5): silu_group(g)
assert not uw
a.wlg0()
a('s_barrier')
def build_stage(Gs, accmap, lorder, goff, xoff, xrel, first_stage):
    rd = []; mf = []
    rem = [(i, g - i, g) for g in Gs for i in range(g + 1)]
    order = []; sG = []; sX = []
    for kind, idx in lorder:
        if kind == 'G':
            for h in range(2):
                rd.append(('G%d%s' % (idx, 'a' if h == 0 else ''), (lambda r, o=goff + 512 * idx + (8 if h == 0 else 0): 'ds_read_b64_tr_b16 %s, v32 offset:%d' % (v(r, 2), o)), 4 * idx + 2 * h))
            sG.append(idx)
        else:
            rd.append(('X%d' % idx, (lambda r, o=xoff + 512 * idx: 'ds_read_b128 %s, v33 offset:%d' % (v(r, 4), o)), xrel + 4 * idx))
            sX.append(idx)
        for pr in list(rem):
            if pr[0] in sG and pr[1] in sX: order.append(pr); rem.remove(pr)
    assert not rem
    seen = set()
    for (i, ip, g) in order:
        mf.append((accmap[g], 'G%d' % i, 4 * i, 'X%d' % ip, xrel + 4 * ip, first_stage and g not in seen)); seen.add(g)
    return rd, mf

Gs = [0, 4, 5, 6, 7]
LO = [('G', 0), ('X', 0), ('X', 4), ('G', 4), ('G', 1), ('X', 3), ('G', 2), ('X', 2), ('G', 3), ('X', 1), ('X', 5), ('G', 5), ('X', 6), ('G', 6), ('X', 7), ('G', 7)]
stagesM = [build_stage(Gs, {g: 4 + 4 * i for i, g in enumerate(Gs)}, LO, 64 * mp, 64 * (7 - mp), 32, mp == 0) for mp in range(8)]
bufM = [112, 48]
acc3 = [4, 8, 12, 16, 20, 48, 52, 56, 60]
LO3 = [('G', 0), ('X', 1), ('G', 1), ('X', 0), ('X', 2), ('G', 2), ('X', 3), ('G', 3)]
stages3 = [build_stage((1, 2, 3), {g: acc3[3 * ch + g - 1] for g in (1, 2, 3)}, LO3, ch * UCH + 64 * mp, ch * KLSZ + 64 * (7 - mp), 16, mp == 0)
           for mp in range(8) for ch in range(3)]
buf3 = [112, 144, 80]
def conv_prologue(stages, bufs):
    toks = [dict() for _ in stages]
    for i in range(len(bufs) - 1):
        for r in stages[i][0]: toks[i][r[0]] = a.ds(r[1](bufs[i] + r[2]))
    return toks
a('s_cmp_eq_u32 s8, 3')
a('s_cbranch_scc1 L_cp3')
st = a.save()
toksM = conv_prologue(stagesM, bufM)
a('s_branch L_cpj')
a('L_cp3:')
a.restore(st)
toks3 = conv_prologue(stages3, buf3)
a('L_cpj:')
silu_group(5)
stamp('silu')
if 'w2burst' in X:
    a.wvm0()
    stamp('hack')
    for q4 in range(4):
        for _ in range(15): w2q.pop(0)()
        stamp('wb%d' % q4)
    a.wvm0()
    stamp('wbend')

def pub_h():
    a.wvm(tH)
    a('s_mov_b64 exec, 3')
    a.vmem('buffer_store_dword v30, v31, %s, 0 offen sc1' % RWS)
    a('s_mov_b64 exec, -1')
POLLH = '''
s_lshl_b32 s86, s9, 1
s_add_u32 s86, s86, s12
s_lshl_b32 s86, s86, 2
s_add_u32 s86, s86, s8
s_lshl_b32 s86, s86, 7
s_add_u32 s86, s86, %d
s_load_dwordx8 s[16:23], s[46:47], s86
''' % WS_FH
def hreg(n, k):
    if n == 0: return 176 + 4 * k
    if n == 1: return 48 + 4 * k
    if n == 2: return 96 + 4 * k
    return 144 + 4 * k if k < 8 else 224 + 4 * (k - 8)
tHL = {}
def h_load(n, k):
    def f():
        if k == 0:
            a('s_add_u32 s97, s76, %d' % (n + 1))
            a('s_and_b32 s97, s97, 3')
            a('s_mul_i32 s97, s97, %d' % (48 * 1024))
            a('s_add_u32 s97, s97, s87')
            a('v_add_u32 v252, s97, v2')
        tHL[(n, k)] = a.vmem('buffer_load_dwordx4 %s, v252, %s, s%d offen sc1' % (v(hreg(n, k), 4), RWS, SK[k]))
    return f
def conv_pair(accA, accB, gA, sreg, tmp):
    a('v_cvt_pk_bf16_f32 %s, %s, %s' % (v(tmp), v(accA), v(accA + 1)))
    a('v_cvt_pk_bf16_f32 %s, %s, %s' % (v(tmp + 2), v(accB), v(accB + 1)))
    a('v_cvt_pk_bf16_f32 %s, %s, %s' % (v(tmp + 1), v(accA + 2), v(accA + 3)))
    a('v_cvt_pk_bf16_f32 %s, %s, %s' % (v(tmp + 3), v(accB + 2), v(accB + 3)))
    a('v_permlane16_swap_b32 %s, %s' % (v(tmp), v(tmp + 2)))
    a('s_nop 0')
    a('v_permlane16_swap_b32 %s, %s' % (v(tmp + 1), v(tmp + 3)))
    return a.vmem('buffer_store_dwordx4 %s, v34, %s, s%d offen offset:%d sc1' % (v(tmp, 4), RWS, sreg, 512 * gA))
def conv_single(accA, gA, sreg, tmp):
    a('v_cvt_pk_bf16_f32 %s, %s, %s' % (v(tmp), v(accA), v(accA + 1)))
    a('v_cvt_pk_bf16_f32 %s, %s, %s' % (v(tmp + 1), v(accA + 2), v(accA + 3)))
    return a.vmem('buffer_store_dwordx2 %s, v35, %s, s%d offen offset:%d sc1' % (v(tmp, 2), RWS, sreg, 512 * gA))

def conv_body(stages, bufs, toks, sidework):
    nbuf = len(bufs); ahead = nbuf - 1
    gi = 0
    for i, (rd, mf) in enumerate(stages):
        nxt = list(stages[i + ahead][0]) if i + ahead < len(stages) else []
        base = bufs[i % nbuf]
        nm = len(mf); done = 0
        for k, (acc, kA, rA, kB, rB, first) in enumerate(mf):
            a.wlg(max(toks[i][kA], toks[i][kB]))
            a('v_mfma_f32_16x16x32_bf16 %s, %s, %s, %s' % (v(acc, 4), v(base + rA, 4), v(base + rB, 4), '0' if first else v(acc, 4)))
            want = min(len(nxt), -(-len(nxt) * (k + 1) // nm))
            while done < want:
                r = nxt[done]
                toks[i + ahead][r[0]] = a.ds(r[1](bufs[(i + ahead) % nbuf] + r[2])); done += 1
            for f in sidework.get(gi, []): f()
            gi += 1

def make_side(tag):
    sw = {}
    pos = 1
    hl = [h_load(0, i) for i in range(12)]
    q = list(w2q)
    while q or hl:
        if pos > args.chkh and hl and (not q or (pos // args.w2step) % 2 == 0): f = hl.pop(0)
        elif q: f = q.pop(0)
        else:
            pos = args.chkh + 1; continue
        sw.setdefault(min(pos, 215), []).append(f); pos += args.w2step if q else args.hstep
    sw.setdefault(args.pubh, []).append(pub_h)
    for i, f in enumerate(split(POLLH)): sw.setdefault(args.pollh - 6 + i, []).append(f)
    ops = [a.wlg0] + scheck_ops('L_sh' + tag, [16, 18, 20, 22], 'v_and_b32 v28, 7, v1\nv_lshlrev_b32 v28, 7, v28', 's86', 1)
    for i, f in enumerate(ops): sw.setdefault(args.chkh - len(ops) + 1 + i, []).append(f)
    if 'cv' in args.fine.split(','):
        for p in (54, 108, 162): sw.setdefault(p, []).append(lambda p=p: stamp('cv%d' % p))
    return sw

st0 = a.save(); sn0 = list(stamp_names)
a('s_cmp_eq_u32 s8, 3')
a('s_cbranch_scc1 L_conv3')
conv_body(stagesM, bufM, toksM, make_side('m'))
a('s_cmp_eq_u32 s8, 1')
a('s_cselect_b32 s88, s89, s88')
a('s_cmp_eq_u32 s8, 2')
a('s_cselect_b32 s88, s90, s88')
conv_single(4, 0, 88, 28)
conv_pair(8, 12, 4, 88, 40)
conv_pair(16, 20, 6, 88, 44)
st_main = a.save(); tk_main = dict(tk); tHL_main = dict(tHL); sn_main = list(stamp_names)
a('s_branch L_convdone')
a('L_conv3:')
a.restore(st0); stamp_names[:] = sn0
conv_body(stages3, buf3, toks3, make_side('w'))
for ch in range(3):
    conv_single(acc3[3 * ch], 1, 88 + ch, 40 + 2 * ch)
    conv_pair(acc3[3 * ch + 1], acc3[3 * ch + 2], 2, 88 + ch, 64 + 4 * ch)
a('L_convdone:')
a.restore(st_main); tk = tk_main; tHL.clear(); tHL.update(tHL_main); stamp_names[:] = sn_main
tA = a.vm
a.lg_done = a.lg
stamp('conv')

hq = [h_load(n, k) for n in range(1, 4) for k in range(12)]
if 'hburst' in X:
    a.wvm0()
    stamp('h0')
    for q4 in range(3):
        for _ in range(12): hq.pop(0)()
        stamp('hb%d' % q4)
    a.wvm0()
    stamp('hbend')
accs = [[4, 8, 12, 16, 20], [40, 44, 240, 244, 248]]
misc = split('''
s_lshr_b32 s4, s92, 3
s_lshl_b32 s4, s4, 5
s_and_b32 s5, s92, 7
s_add_u32 s4, s4, s5
s_lshl_b32 s4, s4, 2
s_add_u32 s4, s4, %d
v_mov_b32 v31, s4
s_lshl_b32 s4, s4, 5
s_add_u32 s4, s4, %d
v_writelane_b32 v31, s4, 1
s_lshr_b32 s56, s56, 2
s_lshl_b32 s86, s11, 9
s_add_u32 s86, s86, %d
v_lshrrev_b32 v34, 4, v1
v_mul_u32_u24 v32, %d, v34
v_and_b32 v33, 15, v1
v_lshl_add_u32 v32, v33, 1, v32
s_lshl_b32 s4, s9, 7
s_lshl_b32 s5, s12, 6
s_add_u32 s4, s4, s5
s_lshl_b32 s5, s76, 4
s_add_u32 s79, s4, s5
s_mul_i32 s80, s11, %d
s_lshl_b32 s5, s79, 1
s_add_u32 s80, s80, s5
s_add_u32 s80, s80, %d
v_mul_u32_u24 v33, 1280, v33
v_mul_u32_u24 v34, 40, v34
v_add_u32 v33, v33, v34
s_mul_i32 s79, s79, 1280
s_mul_i32 s5, s11, 160
s_add_u32 s79, s79, s5
v_mul_f32 v24, s72, v24
v_exp_f32 v24, v24
v_add_f32 v24, 1.0, v24
v_rcp_f32 v24, v24
''' % (WS_FA, WS_PRIV, WS_FA, 20 * AT_PITCH, 80 * AT_PITCH, WS_AT))
def pub_a():
    a.wvm(tA)
    a('s_barrier')
    pub1()
vA = 176
ta = []
def a_load(j):
    def f():
        ta.append(a.vmem('buffer_load_short_d16_hi %s, v32, %s, s80 offen sc1' % (v(vA + j), RWS)))
        if j < 19: a('s_add_u32 s80, s80, %d' % AT_PITCH)
    return f
vR = 60
def tail_ops():
    rt = {}
    ops = []
    for i in range(5):
        for n in range(3):
            def f(n=n, i=i): rt[i] = a.ds('ds_read_b128 %s, v%d offset:%d' % (v(vR + 20 * n + 4 * i, 4), vRR, n * 5120 + 1024 * i))
            ops.append(f)
    for j in range(20):
        def f(j=j):
            if j == 0: a.wvm(ta[-1])
            a('v_mul_f32 %s, v24, %s' % (v(vA + j), v(vA + j)))
            a.wlg(rt[j // 4])
            a('v_add_f32 %s, %s, %s' % (v(vR + j), v(vR + j), v(vR + 20 + j)))
        ops.append(f)
    for j in range(20):
        def f(j=j):
            a('v_add_f32 %s, %s, %s' % (v(vR + j), v(vR + j), v(vR + 40 + j)))
            if j: a('v_fmac_f32 %s, v26, %s' % (v(vA + j - 1), v(vR + j - 1)))
        ops.append(f)
    ops.append(lambda: a('v_fmac_f32 %s, v26, %s' % (v(vA + 19), v(vR + 19))))
    return ops
misc += split('s_nop 0\nv_sub_f32 v26, 1.0, v24')
aq = []; tq = []
a.wvm(tk['w2'])
redq = []
gi = 0
for n in range(4):
    acc = accs[n & 1]
    for k in range(12):
        while (n, k) not in tHL: hq.pop(0)()
        a.wvm(tHL[(n, k)])
        gk = 12 * n + k
        if gk == args.puba:
            assert not misc
            pub_a()
        if gk == args.redk:
            assert not redq
            while aq: aq.pop(0)()
            a.wlg0()
            a('s_barrier')
            tq = tail_ops()
        for i in range(5):
            a('v_mfma_f32_16x16x32_bf16 %s, %s, %s, %s' % (v(acc[i], 4), ac(4 * (5 * k + i), 4), v(hreg(n, k), 4), '0' if k == 0 else v(acc[i], 4)))
            if gi % args.hstep == 0 and hq: hq.pop(0)()
            elif redq and (k >= 2 or (k == 1 and i == 4)) and gi % 2: redq.pop(0)()
            elif misc: misc.pop(0)()
            elif aq: aq.pop(0)()
            elif tq: tq.pop(0)()
            gi += 1
        if gk == args.polla:
            for i, r in enumerate((16, 24, 32, 48)):
                a('s_load_dwordx8 %s, s[46:47], s86 offset:%d' % (s(r, 8), 128 * i))
        if gk == args.chka:
            aq += [a.wlg0] + scheck_ops('L_sa', list(range(16, 40, 2)) + [48, 50, 52, 54], 'v_bfe_u32 v28, v1, 3, 2\nv_and_b32 v29, 7, v1\nv_lshlrev_b32 v28, 12, v28\nv_lshl_add_u32 v28, v29, 7, v28', 's86', 2)
            aq += [a_load(j) for j in range(20)]
    assert not redq
    if n < 3:
        for i in range(5):
            def f(i=i, n=n, acc=acc): a.ds('ds_write_b128 v%d, %s offset:%d' % (vRW + n, v(acc[i], 4), 1024 * i))
            redq.append(f)
    stamp('g2_%d' % n, 'g2' if n < 3 else None)
assert not hq and not aq
ntail = len(tq)
while tq: tq.pop(0)()
if ntail < 4: a('s_nop 7')
acc = accs[1]
vO = 128
for j in range(0, 20, 2):
    r = acc[j // 4] + (j % 4)
    a('v_pk_fma_f32 %s, %s, v[26:27], %s op_sel_hi:[1,0,1]' % (v(vA + j, 2), v(r, 2), v(vA + j, 2)))
for j in range(0, 20, 2):
    a('v_cvt_pk_bf16_f32 %s, %s, %s' % (v(vO + j // 2), v(vA + j), v(vA + j + 1)))
    if j == 6: a.vmem('buffer_store_dwordx4 %s, v33, %s, s79 offen %s' % (v(vO, 4), s(rOUT, 4), args.outfl))
    if j == 14: a.vmem('buffer_store_dwordx4 %s, v33, %s, s79 offen offset:16 %s' % (v(vO + 4, 4), s(rOUT, 4), args.outfl))
a.vmem('buffer_store_dwordx2 %s, v33, %s, s79 offen offset:32 %s' % (v(vO + 8, 2), s(rOUT, 4), args.outfl))
print('tail ops left after the last MFMA:', ntail)
if args.stamps:
    stamp('fin')
    a.wvm0()
    stamp('drain')
    a('''
    s_lshl_b32 s4, s2, 2
    s_add_u32 s4, s4, s8
    s_lshl_b32 s4, s4, 8
    s_add_u32 s4, s4, %d
    v_lshlrev_b32 v32, 3, v1
    s_mov_b64 exec, 0xffffffff
    buffer_store_dwordx2 v[254:255], v32, %s, s4 offen
    ''' % (WS_ST, RWS))
if args.probe:
    stamp('end')
    a('''
    s_waitcnt vmcnt(0) lgkmcnt(0)
    s_sub_u32 s99, s100, s6
    s_lshl_b32 s99, s99, 2
    s_add_u32 s99, s99, 3000
    L_prw:
    s_sleep 4
    s_memrealtime s[100:101]
    s_waitcnt lgkmcnt(0)
    s_sub_u32 s100, s100, s6
    s_cmp_lt_i32 s100, s99
    s_cbranch_scc1 L_prw
    ''')
a('L_end:')
a('s_endpgm')
for label, vcode, soff in cold:
    a('%s_slow:' % label)
    a(vcode)
    a('s_lshl_b32 s4, %s, 5' % soff)
    a('s_add_u32 s4, s4, %d' % WS_PRIV)
    a('s_mov_b32 s82, 0x20000')
    a('%s_lp:' % label)
    a('buffer_load_dword v29, v28, %s, s4 offen sc1' % RWS)
    a('s_waitcnt vmcnt(0)')
    a('v_cmp_ne_u32 vcc, s6, v29')
    a('s_cbranch_vccz %s_ok' % label)
    a('s_sleep %d' % args.sleep)
    a('s_sub_u32 s82, s82, 1')
    a('s_cmp_lg_u32 s82, 0')
    a('s_cbranch_scc1 %s_lp' % label)
    a('s_branch %s_ok' % label)
a('L_codeend:')
kernel_desc(a, KN, vgpr=512, sgpr=102, accum=256)
LL = ['; @launch grid=(256,1,1) block=(256,1,1) lds=%d' % LDS_SIZE]
wrap = lambda lines: file_text(LL, '\n'.join(lines) + '\n')
lines, size, npro, npad = align(a.lines, wrap)
assert size <= 32 * 9 * 128, size
open(args.o, 'w').write(wrap(lines))
print('code bytes', size, 'promoted', npro, 'padded', npad, 'stamps:', ' '.join(stamp_names))
```
